```python
import torch

def _softmax(x, axis=-1):
    return torch.softmax(x, dim=axis)
def _gelu(x):
    return torch.nn.functional.gelu(x, approximate="tanh")
def _silu(x):
    return torch.nn.functional.silu(x)
def _sigmoid(x):
    return torch.sigmoid(x)
def _layernorm(x, axis=-1, eps=1e-5):
    m = x.mean(dim=axis, keepdim=True)
    v = x.var(dim=axis, keepdim=True, unbiased=False)
    return (x - m) / torch.sqrt(v + eps)
def _scatter_add(tgt, idx, src, axis=0):
    return tgt.clone().index_add_(axis, idx, src)
def _segment_sum(src, seg, n):
    out = torch.zeros((n,) + src.shape[1:], dtype=src.dtype)
    return out.index_add_(0, seg, src)
def _pad(x, pw):
    flat = tuple(v for pair in reversed(pw) for v in pair)
    return torch.nn.functional.pad(x, flat)

kernel_name = 'standalone__edge_featured_mpnn_egc__graph'

def setup_inputs():

    _w = (lambda a: (lambda t: t.to(torch.bfloat16) if t.is_floating_point() else t)(torch.as_tensor(a)))
    N, deg, D, De = 25000, 32, 64, max(4, 1)
    E = N * deg
    return {
        "x": _w((lambda *s: torch.randn(*s, dtype=torch.bfloat16) * 0.2)(N, D)),
        "e_attr": _w((lambda *s: torch.randn(*s, dtype=torch.bfloat16) * 0.2)(E, De)),
        "src": _w((lambda lo, hi, *s: torch.randint(lo, hi, s))(0, N, E).to(torch.int64)),
        "dst": _w((lambda lo, hi, *s: torch.randint(lo, hi, s))(0, N, E).to(torch.int64)),
        "u_w": _w((lambda *s: torch.randn(*s, dtype=torch.bfloat16) * 0.05)(D, D)),
        "v_w": _w((lambda *s: torch.randn(*s, dtype=torch.bfloat16) * 0.05)(D, D)),
        "g_w": _w((lambda *s: torch.randn(*s, dtype=torch.bfloat16) * 0.2)(2 * D + De, D)),
    }

def reference(x, e_attr, src, dst, u_w, v_w, g_w):
    N, D = x.shape
    g_in = torch.concatenate([x[dst], x[src], e_attr], axis=-1)
    eta = _sigmoid(g_in @ g_w)
    hv = x @ v_w
    msg = eta * hv[src]
    agg = _segment_sum(msg, dst, N)
    return _silu(x @ u_w + agg)
```

```python
import sys, re

N = 25000
E = 800000
NCH = 250
CH = 3200
WS_WF = 0
WS_TAB = 0x10000
WS_REC = 0x100000
WS_DBG = 0x4000000

OPT = dict(stamps=False)
for a in sys.argv[2:]:
    k, v = a.split("=")
    OPT[k] = int(v)

class A:
    def __init__(self):
        self.l = []
    def __call__(self, s):
        for x in s.strip("\n").split("\n"):
            self.l.append(x if x.strip().endswith(":") and not x.startswith(" ") else "    " + x.strip())
    def label(self, s):
        self.l.append(s + ":")
    def text(self):
        return "\n".join(self.l) + "\n"

def vr(a, n=1):
    return f"v{a}" if n == 1 else f"v[{a}:{a+n-1}]"
def sr(a, n=1):
    return f"s{a}" if n == 1 else f"s[{a}:{a+n-1}]"

def scan64(a, v):
    for sh in (1, 2, 4, 8):
        a(f"s_nop 1\nv_add_u32_dpp v{v}, v{v}, v{v} row_shr:{sh} row_mask:0xf bank_mask:0xf")
    a(f"s_nop 1\nv_add_u32_dpp v{v}, v{v}, v{v} row_bcast:15 row_mask:0xa bank_mask:0xf")
    a(f"s_nop 1\nv_add_u32_dpp v{v}, v{v}, v{v} row_bcast:31 row_mask:0xc bank_mask:0xf")

def kd(name, vgpr, sgpr):
    acc = (vgpr + 3) // 4 * 4
    return f""".section .rodata,"a"
.p2align 6
.amdhsa_kernel {name}
  .amdhsa_next_free_vgpr {vgpr}
  .amdhsa_next_free_sgpr {sgpr}
  .amdhsa_accum_offset {acc}
  .amdhsa_group_segment_fixed_size 0
  .amdhsa_kernarg_size 80
  .amdhsa_user_sgpr_count 2
  .amdhsa_user_sgpr_kernarg_segment_ptr 1
  .amdhsa_system_sgpr_workgroup_id_x 1
.end_amdhsa_kernel
"""

def khead(name):
    return f""".text
.globl {name}
.p2align 8
.type {name},@function
{name}:
"""

K1_HIST = 0
K1_OFFS = 1024
K1_STAGE = 4096
K1_LDS = K1_STAGE + CH * 12
K1_BLOCK = 832

def gen_k1():
    a = A()
    nst = [0]
    def stamp():
        if OPT["stamps"]:
            a(f"s_memtime s[{60+2*nst[0]}:{61+2*nst[0]}]\ns_waitcnt lgkmcnt(0)")
            nst[0] += 1
    a("""
    s_cmp_ge_u32 s2, 256
    s_cbranch_scc1 K1_END
    s_load_dwordx4 s[4:7], s[0:1], 8
    s_load_dwordx2 s[8:9], s[0:1], 24       ; dst
    s_load_dwordx2 s[10:11], s[0:1], 72     ; ws
    s_cmp_ge_u32 s2, 250
    s_cbranch_scc1 K1_MISC
    """)
    stamp()
    a(f"""
    v_lshlrev_b32 v1, 2, v0                 ; t*4
    v_mov_b32 v2, 0
    ds_write_b32 v1, v2
    v_lshlrev_b32 v3, 3, v0                 ; t*8
    v_add_u32 v4, {CH//2*4}, v3
    v_lshlrev_b32 v5, 4, v0                 ; t*16
    v_add_u32 v6, {CH//2*8}, v5
    s_mul_i32 s12, s2, {CH*4}
    s_mul_i32 s13, s2, {CH*8}
    s_mov_b32 s20, 0x050c0100
    v_cmp_gt_u32 vcc, {CH//4}, v0
    s_waitcnt lgkmcnt(0)
    s_add_u32 s8, s8, s12
    s_addc_u32 s9, s9, 0
    s_add_u32 s6, s6, s12
    s_addc_u32 s7, s7, 0
    s_add_u32 s4, s4, s13
    s_addc_u32 s5, s5, 0
    s_and_saveexec_b64 s[22:23], vcc
    global_load_dwordx2 v[8:9], v3, s[8:9]
    global_load_dwordx2 v[10:11], v4, s[8:9]
    global_load_dwordx2 v[12:13], v3, s[6:7]
    global_load_dwordx2 v[14:15], v4, s[6:7]
    global_load_dwordx4 v[16:19], v5, s[4:5]
    global_load_dwordx4 v[20:23], v6, s[4:5]
    v_mov_b32 v7, 1
    v_mov_b32 v2, 2
    s_barrier
    s_waitcnt vmcnt(4)
    """)
    for i in range(4):
        a(f"v_lshlrev_b32_sdwa v{24+i}, v2, v{8+i} dst_sel:DWORD dst_unused:UNUSED_PAD src0_sel:DWORD src1_sel:BYTE_0")
    for i in range(4):
        a(f"ds_add_rtn_u32 v{28+i}, v{24+i}, v7")
    a("s_waitcnt vmcnt(2)")
    for i in range(4):
        a(f"v_perm_b32 v{12+i}, v{8+i}, v{12+i}, s20")
    a("""
    s_mov_b64 exec, -1
    v_mbcnt_lo_u32_b32 v32, -1, 0
    v_mbcnt_hi_u32_b32 v32, -1, v32         ; lane
    v_lshlrev_b32 v33, 4, v32
    s_waitcnt lgkmcnt(0)
    s_barrier
    """)
    stamp()
    a(f"""
    ds_read_b128 v[36:39], v33 offset:{K1_HIST}
    v_lshrrev_b32 v34, 6, v0
    s_nop 0
    v_readfirstlane_b32 s14, v34
    s_waitcnt lgkmcnt(0)
    v_add_u32 v40, v36, v37
    v_add_u32 v41, v40, v38
    v_add_u32 v42, v41, v39
    v_mov_b32 v43, v42
    """)
    scan64(a, 43)
    a(f"""
    v_sub_u32 v44, v43, v42                 ; exclusive
    v_add_u32 v45, v44, v36
    v_add_u32 v46, v44, v40
    v_add_u32 v47, v44, v41
    v_mul_u32_u24 v48, 12, v44
    v_mul_u32_u24 v49, 12, v45
    v_mul_u32_u24 v50, 12, v46
    v_mul_u32_u24 v51, 12, v47
    ds_write_b128 v33, v[48:51] offset:{K1_OFFS}
    s_mov_b64 exec, vcc
    """)
    for i in range(4):
        a(f"ds_read_b32 v{24+i}, v{24+i} offset:{K1_OFFS}")
    a(f"""
    s_waitcnt vmcnt(0)
    s_cmp_ge_u32 s14, 4
    s_cbranch_scc1 K1_NOTAB
    s_mul_i32 s15, s2, {CH}
    s_cmp_eq_u32 s14, 1
    s_cbranch_scc1 K1_T1
    s_cmp_eq_u32 s14, 2
    s_cbranch_scc1 K1_T2
    s_cmp_eq_u32 s14, 3
    s_cbranch_scc1 K1_T3
    v_mov_b32 v52, v44
    v_mov_b32 v53, v36
    s_branch K1_TW
K1_T1:
    v_mov_b32 v52, v45
    v_mov_b32 v53, v37
    s_branch K1_TW
K1_T2:
    v_mov_b32 v52, v46
    v_mov_b32 v53, v38
    s_branch K1_TW
K1_T3:
    v_mov_b32 v52, v47
    v_mov_b32 v53, v39
K1_TW:
    v_add_u32 v52, s15, v52
    v_lshl_or_b32 v52, v52, 12, v53
    s_lshl_b32 s16, s14, 10
    s_lshl_b32 s17, s2, 2
    s_add_u32 s16, s16, s17
    s_add_u32 s16, s16, {WS_TAB}
    v_lshlrev_b32 v53, 12, v32
    v_add_u32 v53, s16, v53
    global_store_dword v53, v52, s[10:11]
K1_NOTAB:
    s_waitcnt lgkmcnt(0)
    """)
    for i in range(4):
        a(f"v_mad_u32_u24 v{24+i}, v{28+i}, 12, v{24+i}")
    for i in range(4):
        e0 = 16 + 2 * i
        a(f"v_add_u32 v{24+i}, {K1_STAGE}, v{24+i}")
    for i in range(4):
        e0 = 16 + 2 * i
        a(f"ds_write2_b32 v{24+i}, v{e0}, v{e0+1} offset0:0 offset1:1")
        a(f"ds_write_b32 v{24+i}, v{12+i} offset:8")
    a(f"""
    s_mul_i32 s12, s2, {CH*12}
    s_add_u32 s12, s12, {WS_REC}
    s_add_u32 s10, s10, s12
    s_addc_u32 s11, s11, 0
    v_add_u32 v6, {CH*4}, v5
    v_add_u32 v7, {CH*8}, v5
    s_waitcnt lgkmcnt(0)
    s_barrier
    """)
    stamp()
    a(f"""
    ds_read_b128 v[8:11], v5 offset:{K1_STAGE}
    ds_read_b128 v[12:15], v5 offset:{K1_STAGE+CH*4}
    ds_read_b128 v[16:19], v5 offset:{K1_STAGE+CH*8}
    s_waitcnt lgkmcnt(2)
    global_store_dwordx4 v5, v[8:11], s[10:11]
    s_waitcnt lgkmcnt(1)
    global_store_dwordx4 v6, v[12:15], s[10:11]
    s_waitcnt lgkmcnt(0)
    global_store_dwordx4 v7, v[16:19], s[10:11]
    """)
    if OPT["stamps"]:
        stamp()
        a("s_waitcnt vmcnt(0)")
        stamp()
        a(f"""
        s_cmp_lg_u32 s14, 0
        s_cbranch_scc1 K1_END
        s_load_dwordx2 s[10:11], s[0:1], 72
        s_lshl_b32 s12, s2, 6
        s_add_u32 s12, s12, {WS_DBG}
        v_mov_b32 v1, s12
        s_waitcnt lgkmcnt(0)
        """)
        for i in range(nst[0]):
            a(f"v_mov_b32 v2, s{60+2*i}\nglobal_store_dword v1, v2, s[10:11] offset:{4*i}")
    a("""
    s_endpgm
K1_MISC:
    s_load_dwordx4 s[12:15], s[0:1], 32     ; u_w, v_w
    s_load_dwordx2 s[16:17], s[0:1], 48     ; g_w
    v_lshrrev_b32 v1, 6, v0
    v_mbcnt_lo_u32_b32 v2, -1, 0
    v_mbcnt_hi_u32_b32 v2, -1, v2           ; lane
    v_readfirstlane_b32 s18, v1             ; wave
    s_waitcnt lgkmcnt(0)
    """)
    a(f"""
    s_cmp_ge_u32 s18, 4
    s_cbranch_scc1 K1_M1
    s_lshl_b32 s19, s2, 2
    s_add_u32 s19, s19, {WS_TAB}
    v_lshlrev_b32 v3, 10, v0
    v_add_u32 v3, s19, v3
    v_mov_b32 v4, 0
    global_store_dword v3, v4, s[10:11]
K1_M1:
    s_sub_u32 s19, s2, 250
    s_mul_i32 s19, s19, 13
    s_add_u32 s19, s19, s18
    s_cmp_ge_u32 s19, 34
    s_cbranch_scc1 K1_END
    v_and_b32 v3, 31, v2                    ; n
    v_lshrrev_b32 v4, 5, v2                 ; h
    s_cmp_ge_u32 s19, 32
    s_cbranch_scc1 K1_MC
    s_lshr_b32 s20, s19, 3                  ; matrix 0:B 1:V 2:A 3:U
    s_bfe_u32 s21, s19, 0x10002             ; t
    s_and_b32 s22, s19, 3                   ; s
    s_cmp_eq_u32 s20, 1
    s_cselect_b32 s24, s14, s16
    s_cselect_b32 s25, s15, s17
    s_cmp_eq_u32 s20, 3
    s_cselect_b32 s24, s12, s24
    s_cselect_b32 s25, s13, s25
    s_cmp_eq_u32 s20, 0
    s_cselect_b32 s23, 8192, 0
    s_lshl_b32 s26, s22, 11                 ; s*16 rows*128 B
    s_add_u32 s23, s23, s26
    s_lshl_b32 s26, s21, 6                  ; t*32*2 B
    s_add_u32 s23, s23, s26
    v_lshlrev_b32 v5, 10, v4                ; h*8 rows*128
    v_lshl_add_u32 v5, v3, 1, v5
    v_add_u32 v5, s23, v5
    """)
    for j in range(8):
        a(f"global_load_ushort v{8+j}, v5, s[24:25] offset:{128*j}")
    a(f"""
    s_lshl_b32 s26, s19, 10
    v_lshlrev_b32 v6, 4, v2
    v_add_u32 v6, s26, v6
    s_waitcnt vmcnt(0)
    v_lshl_or_b32 v16, v9, 16, v8
    v_lshl_or_b32 v17, v11, 16, v10
    v_lshl_or_b32 v18, v13, 16, v12
    v_lshl_or_b32 v19, v15, 16, v14
    global_store_dwordx4 v6, v[16:19], s[10:11]
    s_endpgm
K1_MC:
    s_sub_u32 s21, s19, 32                  ; t
    s_lshl_b32 s26, s21, 6
    s_add_u32 s23, s26, {128*128}
    v_lshlrev_b32 v5, 1, v3
    v_add_u32 v5, s23, v5
    """)
    for j in range(4):
        a(f"global_load_ushort v{8+j}, v5, s[16:17] offset:{128*j}")
    a(f"""
    s_lshl_b32 s26, s21, 9
    s_add_u32 s26, s26, 32768
    v_lshlrev_b32 v6, 3, v2
    v_add_u32 v6, s26, v6
    v_cmp_gt_u32 vcc, 32, v2
    s_waitcnt vmcnt(0)
    v_lshl_or_b32 v16, v9, 16, v8
    v_lshl_or_b32 v17, v11, 16, v10
    v_cndmask_b32 v16, 0, v16, vcc
    v_cndmask_b32 v17, 0, v17, vcc
    global_store_dwordx2 v6, v[16:17], s[10:11]
K1_END:
    s_endpgm
    """)
    return a.text()

NROW = 131
L_XA = 0
L_AG = NROW * 256
L_GB = 2 * NROW * 256
L_RW = L_GB + 32768
L_RE = L_RW + 16384
L_CNT = L_RE + 32768
L_NOFF = L_CNT + 512
L_SP = L_NOFF + 512
L_FLG = L_SP + 1088
K2_LDS = L_FLG + 64
DUMMY = 130 * 256
SPILL0 = 98 * 256
NULLW = 0xFFFF | (DUMMY << 16)
XBT = [L_XA + SPILL0, L_XA + SPILL0 + 4096, L_AG + SPILL0, L_AG + SPILL0 + 4096]

V_TAB = 8
V_AUW = 16
V_XA0, V_PV0, V_XA1, V_PV1 = 48, 50, 52, 54
V_N, V_D, V_R, V_RES = 56, 58, 60, 62
V_XF = 48
V_Z0, V_H0, V_Z1, V_H1 = 64, 80, 96, 112
V_REC = 64
V_WB, V_WV, V_WC = 128, 160, 192
V_F = [196, 212]
V_PACC = 196
V_E = [228, 230]
V_IDX = 232
V_RD = 240
V_ARE, V_AIDX, V_AGM, V_COL = 244, 245, 246, 247
V_ADR = [248, 250]
V_MAXD = 252
V_LANE = 253
V_T0, V_T1 = 254, 255

S_X = 8
S_OUT = 12
S_WS = 16
S_W = 20
S_P = 21
S_SEC = 22
S_FIRST = 23
S_SAFE = 24
S_J0 = 25
S_WIN = 26
S_N = 27
S_T = 28
S_GB = 29
S_C = 30
S_ONE = 32
S_KK0 = 34
S_M = 35
S_DD = 36
S_TMP = 38
S_MSK = 48
S_ST = 80

def valu_fast(Z, H, XA, PV):
    L = []
    zp = lambda i: vr(Z + 2 * i, 2)
    hp = lambda i: vr(H + 2 * i, 2)
    t = lambda i: f"v_pk_fma_f32 {zp(i)}, {zp(i)}, {sr(S_C,2)}, {vr(XA,2)}"
    ex = lambda k: f"v_exp_f32 v{Z+k}, v{Z+k}"
    Np, Dp, Rp, RES = vr(V_N, 2), vr(V_D, 2), vr(V_R, 2), vr(V_RES, 2)
    def chain(i):
        if i == 0:
            return [f"v_pk_add_f32 {Dp}, {zp(0)}, {sr(S_ONE,2)}"]
        src = hp(0) if i == 1 else Np
        return [f"v_pk_fma_f32 {Np}, {src}, {zp(i)}, {src}",
                f"v_pk_fma_f32 {Np}, {hp(i)}, {Dp}, {Np}",
                f"v_pk_fma_f32 {Dp}, {Dp}, {zp(i)}, {Dp}"]
    L.append(t(0)); L.append(t(1))
    for i in range(8):
        c = chain(i - 1) if i >= 1 else []
        L.append(ex(2 * i))
        if c: L.append(c.pop(0))
        L.append(ex(2 * i + 1))
        if i + 2 < 8: L.append(t(i + 2))
        L += c
    c = chain(7)
    L += c
    L.append(f"v_rcp_f32 v{V_R}, v{V_D}")
    L.append(f"v_rcp_f32 v{V_R+1}, v{V_D+1}")
    L.append(f"v_max3_f32 v{V_MAXD}, v{V_D}, v{V_D+1}, v{V_MAXD}")
    L.append(f"v_pk_fma_f32 {RES}, {Np}, {Rp}, {vr(PV,2)}")
    return L

def valu_safe(Z, H, XA, PV):
    L = []
    zp = lambda i: vr(Z + 2 * i, 2)
    hp = lambda i: vr(H + 2 * i, 2)
    RES = vr(V_RES, 2)
    for i in range(8): L.append(f"v_pk_fma_f32 {zp(i)}, {zp(i)}, {sr(S_C,2)}, {vr(XA,2)}")
    for k in range(16): L.append(f"v_exp_f32 v{Z+k}, v{Z+k}")
    for i in range(8): L.append(f"v_pk_add_f32 {zp(i)}, {zp(i)}, {sr(S_ONE,2)}")
    for k in range(16): L.append(f"v_rcp_f32 v{Z+k}, v{Z+k}")
    Np = vr(V_N, 2)
    for i in range(8):
        src = vr(PV, 2) if i == 0 else Np
        dst = RES if i == 7 else Np
        L.append(f"v_pk_fma_f32 {dst}, {hp(i)}, {zp(i)}, {src}")
    return L

def mfmas(Z, H, t, F, Eop):
    L = [f"v_mfma_f32_32x32x8_bf16 {vr(Z,16)}, {vr(Eop,2)}, {vr(V_WC+2*t,2)}, 0"]
    for s in range(4):
        L.append(f"v_mfma_f32_32x32x16_bf16 {vr(Z,16)}, {vr(F+4*s,4)}, {vr(V_WB+16*t+4*s,4)}, {vr(Z,16)}")
    for s in range(4):
        c = "0" if s == 0 else vr(H, 16)
        L.append(f"v_mfma_f32_32x32x16_bf16 {vr(H,16)}, {vr(F+4*s,4)}, {vr(V_WV+16*t+4*s,4)}, {c}")
    return L

def weave(valu, inserts):
    out = []
    ins = sorted(inserts, key=lambda x: x[0])
    k = 0
    for i, v in enumerate(valu + [None]):
        while k < len(ins) and ins[k][0] <= i:
            out += ins[k][1]; k += 1
        if v is not None: out.append(v)
    return out

REG = re.compile(r"v\[(\d+):(\d+)\]|v(\d+)")
def regs_of(op):
    out = []
    for m in REG.finditer(op):
        if m.group(3) is not None: out.append({int(m.group(3))})
        else: out.append(set(range(int(m.group(1)), int(m.group(2)) + 1)))
    return out

def rw_sets(line):
    s = line.strip()
    op = s.split()[0]
    r = regs_of(s[len(op):])
    if op.startswith("ds_read"): return set().union(*r[1:]), r[0]
    if op.startswith("ds_write"): return set().union(*r), set()
    if op.startswith("buffer_load") and " lds" in s: return set().union(*r), set()
    if op.startswith("v_"):
        rd = set().union(*r[1:]) if len(r) > 1 else set()
        return rd, r[0]
    return set(), set()

def add_lgkm_waits(body):
    n = len(body)
    need = [None] * n
    pend = []
    for rnd in range(3):
        for i, line in enumerate(body):
            s = line.strip()
            if s.startswith("@WAITREGS"):
                rd = set().union(*regs_of(s)); wr = set()
            else:
                rd, wr = rw_sets(s)
            touch = rd | wr
            idx = -1
            for k, d in enumerate(pend):
                if d & touch: idx = k
            if idx >= 0:
                w = len(pend) - 1 - idx
                w = min(w, 15)
                need[i] = w if need[i] is None else min(need[i], w)
            if need[i] is not None:
                pend = pend[len(pend) - need[i]:] if need[i] > 0 else []
            if s.startswith("ds_"):
                pend.append(wr)
    out = []
    for i, line in enumerate(body):
        if need[i] is not None: out.append(f"s_waitcnt lgkmcnt({need[i]})")
        if not line.strip().startswith("@"): out.append(line)
    return out

TRANS = ("v_exp_f32", "v_rcp_f32")
def check_hazards(body, name):
    ins = []
    guard = False
    for l in body:
        s = l.strip()
        if s == ";GUARD_BEGIN": guard = True; continue
        if s == ";GUARD_END": guard = False; continue
        if s.endswith(":") or s.startswith(";"): continue
        ins.append((s, guard))
    n = len(ins)
    for i in range(n):
        s, g = ins[i]
        op = s.split()[0]
        rd_i, wr_i = rw_sets(s)
        dist = 0
        for k in range(1, 24):
            s2, g2 = ins[(i + k) % n]
            op2 = s2.split()[0]
            rd, wr = rw_sets(s2)
            req = 0
            if op.startswith("v_mfma"):
                if op2.startswith("v_mfma"):
                    r2 = regs_of(s2[len(op2):])
                    if wr_i & (r2[1] | r2[2]): req = 12
                    if len(r2) > 3 and (wr_i & r2[3]) and wr_i != r2[3]: req = 10
                elif (rd | wr) & wr_i: req = 12
                r1 = regs_of(s[len(op):])
                if len(r1) > 3 and op2.startswith("v_") and not op2.startswith("v_mfma") and (wr & r1[3]): req = max(req, 7)
            elif op in TRANS:
                if op2.startswith("v_") and op2 not in TRANS and (rd & wr_i): req = 1
                if op2.startswith("v_mfma") and (rd & wr_i): req = 2
            elif op.startswith("v_"):
                if op2.startswith("v_mfma") and (rd & wr_i): req = 2
            if dist < req:
                raise SystemExit(f"hazard in {name}: '{s}' -> '{s2}' dist {dist} < {req}")
            if not g2 or g:
                m = re.match(r"s_nop (\d+)", s2)
                dist += int(m.group(1)) + 1 if m else 1

def idx_reads(off):
    return [f"ds_read_u16 v{V_IDX+2*j}, v{V_AIDX} offset:{j*1024+off}" for j in range(4)]
def dma_issue():
    L = []
    for j in range(4):
        L += [f"s_add_u32 m0, s{S_GB}, {j*1024}", "s_nop 0",
              f"buffer_load_dwordx4 {vr(V_IDX+2*j,2)}, {sr(S_X,4)}, 0 idxen offen lds"]
    return L
def frag_reads(F, Eop, off):
    return [f"ds_read_b64 {vr(Eop,2)}, v{V_ARE} offset:{off}"] + \
           [f"ds_read_b128 {vr(F+4*s,4)}, v{V_RD+s}" for s in range(4)]
def gm_reads(ADR, off):
    return [f"ds_read_u16 v{ADR+p}, v{V_AGM} offset:{p*1024+off}" for p in range(2)]
def gm_adds(ADR):
    return [f"v_add_u32 v{ADR+p}, v{ADR+p}, v{V_COL}" for p in range(2)]
def xa_reads(ADR, XA, PV, t):
    return [f"ds_read_b32 v{XA+p}, v{ADR+p} offset:{L_XA+128*t}" for p in range(2)] + \
           [f"ds_read_b32 v{PV+p}, v{ADR+p} offset:{L_AG+128*t}" for p in range(2)]
def res_writes(ADR, t):
    return [f"ds_write_b32 v{ADR+p}, v{V_RES+p} offset:{L_AG+128*t}" for p in range(2)]

def gen_loop(tag, valu):
    body = []
    for u in range(2):
        cur, nxt = u, 1 - u
        v = valu(V_Z0, V_H0, V_XA0, V_PV0)
        nv = len(v)
        m = mfmas(V_Z1, V_H1, 1, V_F[cur], V_E[cur])
        ins = []
        span = nv - 14
        for k, x in enumerate(m): ins.append((1 + k * span // 9, [x]))
        ins.append((2, xa_reads(V_ADR[cur], V_XA1, V_PV1, 1)))
        ins.append((8, idx_reads(32 * (u + 2))))
        ins.append((nv // 2 - 2, ["s_waitcnt vmcnt(0)"] + frag_reads(V_F[nxt], V_E[nxt], 64 * (u + 1))))
        ins.append((nv - 8, [f"@WAITREGS {vr(V_F[nxt],16)} {vr(V_IDX,8)}",
                             f"s_add_u32 s{S_TMP}, s{S_T}, 2", f"s_cmp_lt_u32 s{S_TMP}, s{S_N}",
                             f"s_cbranch_scc0 {tag}_ND{u}", ";GUARD_BEGIN"] + dma_issue() + [";GUARD_END", f"{tag}_ND{u}:"]))
        ins.append((nv, res_writes(V_ADR[cur], 0)))
        body += weave(v, ins)
        v = valu(V_Z1, V_H1, V_XA1, V_PV1)
        m = mfmas(V_Z0, V_H0, 0, V_F[nxt], V_E[nxt])
        ins = []
        for k, x in enumerate(m): ins.append((1 + k * span // 9, [x]))
        ins.append((2, gm_reads(V_ADR[nxt], 32 * (u + 1))))
        ins.append((16, gm_adds(V_ADR[nxt]) + xa_reads(V_ADR[nxt], V_XA0, V_PV0, 0)))
        if u == 1:
            ins.append((24, [f"v_add_u32 v{V_ARE}, 128, v{V_ARE}", f"v_add_u32 v{V_AIDX}, 64, v{V_AIDX}",
                             f"v_add_u32 v{V_AGM}, 64, v{V_AGM}"]))
        tail = res_writes(V_ADR[cur], 1) + [f"s_add_u32 s{S_T}, s{S_T}, 1", f"s_cmp_lt_u32 s{S_T}, s{S_N}"]
        tail += [f"s_cbranch_scc0 {tag}_EXIT"] if u == 0 else [f"s_cbranch_scc1 {tag}_LOOP"]
        ins.append((nv, tail))
        body += weave(v, ins)
    body = add_lgkm_waits(body)
    check_hazards(body, tag)
    return body

def gen_k2():
    a = A()
    nst = [0]
    def stamp():
        if OPT["stamps"]:
            a(f"s_memtime s[{S_ST+2*nst[0]}:{S_ST+1+2*nst[0]}]\ns_waitcnt lgkmcnt(0)")
            nst[0] += 1
    T = S_TMP
    a(f"""
    s_cmp_ge_u32 s2, 256
    s_cbranch_scc1 K2_END
    s_load_dwordx2 s[{S_X}:{S_X+1}], s[0:1], 0
    s_load_dwordx2 s[{S_OUT}:{S_OUT+1}], s[0:1], 56
    s_load_dwordx2 s[{S_WS}:{S_WS+1}], s[0:1], 72
    v_lshrrev_b32 v1, 6, v0
    v_and_b32 v{V_LANE}, 63, v0
    v_readfirstlane_b32 s{S_W}, v1
    s_mov_b32 s{S_C}, 0xbfb8aa3b
    s_mov_b32 s{S_C+1}, 0xbfb8aa3b
    s_mov_b32 s{S_ONE}, 1.0
    s_mov_b32 s{S_ONE+1}, 1.0
    s_mov_b32 s{S_SAFE}, 0
    s_and_b32 s{S_P}, s{S_W}, 3
    s_lshr_b32 s{S_SEC}, s{S_W}, 2
    s_lshl_b32 s{S_GB}, s{S_W}, 12
    s_add_u32 s{S_GB}, s{S_GB}, {L_GB}
    s_waitcnt lgkmcnt(0)
    s_or_b32 s{S_X+1}, s{S_X+1}, 0x00800000
    s_mov_b32 s{S_X+2}, {N}
    s_mov_b32 s{S_X+3}, 0x00020000
    s_or_b32 s{S_OUT+1}, s{S_OUT+1}, 0x00800000
    s_mov_b32 s{S_OUT+2}, {N}
    s_mov_b32 s{S_OUT+3}, 0x00020000
    s_mov_b32 s{S_WS+2}, {WS_REC + E*12}
    s_mov_b32 s{S_WS+3}, 0x00020000
    """)
    stamp()
    a(f"""
K2_START:
    s_mov_b32 s{S_FIRST}, 1
    s_mov_b32 s{S_J0}, 0
    s_mov_b32 s{S_WIN}, 32
K2_ROUND:
    s_lshl_b32 s{T}, s2, 10
    s_lshl_b32 s{T+1}, s{S_W}, 7
    s_add_u32 s{T}, s{T}, s{T+1}
    s_add_u32 s{T}, s{T}, {WS_TAB}
    v_lshrrev_b32 v1, 4, v{V_LANE}
    v_lshlrev_b32 v1, 5, v1
    buffer_load_dwordx4 {vr(V_TAB,4)}, v1, {sr(S_WS,4)}, s{T} offen
    buffer_load_dwordx4 {vr(V_TAB+4,4)}, v1, {sr(S_WS,4)}, s{T} offen offset:16
    v_lshlrev_b32 v2, 4, v{V_LANE}          ; lane*16
    s_cmp_eq_u32 s{S_FIRST}, 0
    s_cbranch_scc1 K2_NODMA
    s_lshl_b32 s{T}, s{S_W}, 12
    """)
    for j in range(4):
        a(f"""
        s_add_u32 m0, s{S_GB}, {j*1024}
        s_add_u32 s{T+1}, s{T}, {j*1024}
        buffer_load_dwordx4 v2, {sr(S_WS,4)}, s{T+1} offen lds
        """)
    a(f"""
    v_lshrrev_b32 v3, 3, v{V_LANE}
    v_bfe_u32 v4, v{V_LANE}, 4, 1
    v_and_b32 v5, 7, v{V_LANE}
    v_xor_b32 v5, v5, v4
    """)
    for j in range(4):
        a(f"v_xor_b32 v{V_T0}, {2*j}, v5\nv_lshlrev_b32 v{V_IDX+2*j+1}, 4, v{V_T0}")
    a(f"""
    s_lshl_b32 s{T}, s{S_W}, 4
    v_add_u32 v3, s{T}, v3
    v_lshlrev_b32 v3, 8, v3
    v_add_u32 v6, s2, v3
    v_add_u32 v4, 2048, v6                  ; i=1
    s_and_b32 s{T+1}, s{S_W}, 1             ; j = 2*(w&1) + i
    s_lshl_b32 s{T+2}, s{T+1}, 2
    v_xor_b32 v7, s{T+2}, v5
    v_xor_b32 v5, 2, v7
    v_lshlrev_b32 v7, 4, v7
    v_lshlrev_b32 v5, 4, v5
    s_lshr_b32 s{T+3}, s{S_W}, 1            ; tile
    s_and_b32 s{T+4}, s{T+3}, 1
    s_lshl_b32 s{T+4}, s{T+4}, 12
    s_cmp_ge_u32 s{T+3}, 2
    s_cselect_b32 s{T+5}, {L_AG-L_XA}, 0
    s_add_u32 s{T+4}, s{T+4}, s{T+5}
    s_add_u32 s{T+4}, s{T+4}, {L_XA+SPILL0}
    s_lshl_b32 s{T+1}, s{T+1}, 11
    s_add_u32 m0, s{T+4}, s{T+1}
    s_nop 0
    buffer_load_dwordx4 v[6:7], {sr(S_X,4)}, 0 idxen offen lds
    s_add_u32 m0, m0, 1024
    s_nop 0
    buffer_load_dwordx4 v[4:5], {sr(S_X,4)}, 0 idxen offen lds
    v_lshlrev_b32 v3, 3, v{V_LANE}
    s_mov_b32 s{T}, 32768
    buffer_load_dwordx2 {vr(V_WC,2)}, v3, {sr(S_WS,4)}, s{T} offen
    buffer_load_dwordx2 {vr(V_WC+2,2)}, v3, {sr(S_WS,4)}, s{T} offen offset:512
K2_NODMA:
    ; (c) prefill
    v_lshlrev_b32 v3, 4, v0                 ; tid*16
    v_mov_b32 v4, {NULLW}
    v_mov_b32 v5, v4
    v_mov_b32 v6, v4
    v_mov_b32 v7, v4
    v_add_u32 v1, {L_RW}, v3
    ds_write_b128 v1, v[4:7]
    ds_write_b128 v1, v[4:7] offset:8192
    v_mov_b32 v4, 0
    v_mov_b32 v5, 0
    v_mov_b32 v6, 0
    v_mov_b32 v7, 0
    s_nop 0
    ds_write_b128 v1, v[4:7] offset:16384
    ds_write_b128 v1, v[4:7] offset:24576
    ds_write_b128 v1, v[4:7] offset:32768
    ds_write_b128 v1, v[4:7] offset:40960
    v_lshlrev_b32 v3, 2, v0
    v_add_u32 v1, {L_CNT}, v3
    v_cmp_gt_u32 vcc, 128, v0
    s_and_saveexec_b64 s[{T}:{T+1}], vcc
    ds_write_b32 v1, v4
    s_mov_b64 exec, s[{T}:{T+1}]
    v_cmp_gt_u32 vcc, 64, v0
    s_and_saveexec_b64 s[{T}:{T+1}], vcc
    ds_write_b32 v3, v4 offset:{L_XA+DUMMY}
    v_add_u32 v1, {L_AG+DUMMY}, v3
    ds_write_b32 v1, v4
    s_mov_b64 exec, s[{T}:{T+1}]
    v_lshlrev_b32 v3, 3, v0
    v_add_u32 v1, {L_SP}, v3
    v_mov_b32 v4, 0x7fff
    v_cmp_gt_u32 vcc, 132, v0
    s_and_saveexec_b64 s[{T}:{T+1}], vcc
    ds_write_b64 v1, v[4:5]
    s_mov_b64 exec, s[{T}:{T+1}]
    v_mov_b32 v1, {L_FLG}
    ds_write_b32 v1, v5
    s_cmp_eq_u32 s{S_FIRST}, 0
    s_cbranch_scc1 K2_NOFLG
    ds_write_b32 v1, v5 offset:4
    v_mov_b32 v{V_MAXD}, 0
K2_NOFLG:
    v_and_b32 v1, 15, v{V_LANE}
    v_cmp_gt_u32 vcc, s{S_WIN}, v1
    v_add_u32 v1, s{S_J0}, v1               ; j
    v_mul_u32_u24 v2, 12, v1
    v_add_u32 v2, {WS_REC}, v2
    v_mov_b32 v3, 0x7fffffff
    v_cndmask_b32 v1, v3, v1, vcc
    s_cmp_eq_u32 s{S_WIN}, 32
    s_cselect_b32 s{T}, 16, 0x40000000
    v_add_u32 v3, s{T}, v1
    s_cmp_eq_u32 s{S_FIRST}, 0
    s_cbranch_scc1 K2_W0
    s_waitcnt vmcnt(8)
    s_branch K2_W1
K2_W0:
    s_waitcnt vmcnt(0)
K2_W1:
    """)
    stamp()
    for p in range(8):
        a(f"""
        v_and_b32 v{16+p}, 0xfff, v{V_TAB+p}
        v_lshrrev_b32 v{24+p}, 12, v{V_TAB+p}
        v_cmp_lt_u32 s[{S_MSK+2*p}:{S_MSK+2*p+1}], v1, v{16+p}
        v_mad_u32_u24 v{24+p}, v{24+p}, 12, v2
        """)
    for p in range(8):
        a(f"""
        s_mov_b64 exec, s[{S_MSK+2*p}:{S_MSK+2*p+1}]
        s_cbranch_execz K2_LA{p}
        buffer_load_dwordx3 {vr(V_REC+4*p,3)}, v{24+p}, {sr(S_WS,4)}, 0 offen
K2_LA{p}:
        """)
    a("s_mov_b64 exec, -1")
    for p in range(8):
        a(f"v_cmp_lt_u32 s[{S_MSK+16+2*p}:{S_MSK+16+2*p+1}], v3, v{16+p}")
    for p in range(8):
        a(f"""
        s_mov_b64 exec, s[{S_MSK+16+2*p}:{S_MSK+16+2*p+1}]
        s_cbranch_execz K2_LB{p}
        buffer_load_dwordx3 {vr(V_REC+32+4*p,3)}, v{24+p}, {sr(S_WS,4)}, 0 offen offset:192
K2_LB{p}:
        """)
    a(f"""
    s_mov_b64 exec, -1
    v_max3_u32 v4, v16, v17, v18
    v_max3_u32 v4, v19, v20, v4
    v_max3_u32 v4, v21, v22, v4
    v_max_u32 v4, v23, v4
    s_add_u32 s{T}, s{S_J0}, s{S_WIN}
    v_cmp_lt_u32 s[{T+2}:{T+3}], s{T}, v4
    """)
    a(f"""
    s_waitcnt vmcnt(0) lgkmcnt(0)
    s_barrier
    """)
    stamp()
    a(f"""
    s_cmp_eq_u64 s[{T+2}:{T+3}], 0
    s_cbranch_scc1 K2_NOMORE
    v_mov_b32 v1, {L_FLG}
    v_mov_b32 v2, 1
    ds_write_b32 v1, v2
K2_NOMORE:
    ; (g) ranks
    v_mov_b32 v1, 4096
    """)
    for k in range(16):
        r = V_REC + 4 * k
        a(f"""
        s_mov_b64 exec, s[{S_MSK+2*k}:{S_MSK+2*k+1}]
        s_cbranch_execz K2_RK{k}
        v_lshrrev_b32 v{16+k}, 22, v{r+2}
        v_add_u32 v{16+k}, {L_CNT}, v{16+k}
        ds_add_rtn_u32 v{r+3}, v{16+k}, v1
K2_RK{k}:
        """)
    a("s_mov_b64 exec, -1")
    a(f"""
    v_and_b32 v1, 1, v{V_LANE}              ; m0
    v_bfe_u32 v2, v{V_LANE}, 1, 1           ; m1
    v_bfe_u32 v3, v{V_LANE}, 2, 1           ; m2
    v_bfe_u32 v4, v{V_LANE}, 3, 1           ; m3
    v_bfe_u32 v5, v{V_LANE}, 4, 1           ; m4
    v_lshrrev_b32 v6, 5, v{V_LANE}          ; h
    v_lshl_or_b32 v7, v3, 1, v1             ; j(m) = 2*m2 + m0
    v_lshl_or_b32 v{V_T0}, v4, 1, v2
    v_lshl_or_b32 v{V_T0}, v5, 2, v{V_T0}   ; i(m) = m1 + 2*m3 + 4*m4
    v_lshl_or_b32 v{V_T1}, v7, 3, v{V_T0}   ; r(m)
    v_lshlrev_b32 v{V_T1}, 7, v{V_T1}
    v_xor_b32 v4, v4, v6                    ; h^m3
    v_lshl_or_b32 v4, v7, 1, v4
    v_lshl_or_b32 v{V_T1}, v4, 4, v{V_T1}
    v_lshl_or_b32 v{V_ARE}, v7, 8, v{V_T0}
    v_lshlrev_b32 v{V_ARE}, 3, v{V_ARE}
    v_lshrrev_b32 v{V_AIDX}, 3, v{V_LANE}
    v_lshlrev_b32 v{V_AIDX}, 2, v{V_AIDX}
    v_lshlrev_b32 v{V_AGM}, 11, v6
    v_and_b32 v{V_COL}, 31, v{V_LANE}
    v_lshlrev_b32 v{V_COL}, 2, v{V_COL}
    s_cmp_eq_u32 s{S_FIRST}, 0
    s_cbranch_scc1 K2_NOINIT
    s_lshr_b32 s{T+3}, s{S_W}, 1
    s_and_b32 s{T+4}, s{T+3}, 1
    s_lshl_b32 s{T+4}, s{T+4}, 12
    s_cmp_ge_u32 s{T+3}, 2
    s_cselect_b32 s{T+5}, {L_AG-L_XA}, 0
    s_add_u32 s{T+4}, s{T+4}, s{T+5}
    s_add_u32 s{T+4}, s{T+4}, {L_XA+SPILL0}
    """)
    for s in range(4):
        a(f"v_xor_b32 v{32+s}, {s<<5}, v{V_T1}\nv_add_u32 v{32+s}, s{T+4}, v{32+s}")
    for s in range(4):
        a(f"ds_read_b128 {vr(V_XF+4*s,4)}, v{32+s}")
    a(f"""
    s_and_b32 s{T+1}, s{S_W}, 1
    s_lshl_b32 s{T+2}, s{T+1}, 13
    s_add_u32 s{T+2}, s{T+2}, {L_GB+16384}
    v_lshlrev_b32 v1, 4, v{V_LANE}
    v_add_u32 v2, s{T+2}, v1
    """)
    for f in range(8):
        a(f"ds_read_b128 {vr(V_WB+4*f,4)}, v2 offset:{f*1024}")
    a(f"v_add_u32 v1, {L_GB}, v1")
    for f in range(8):
        a(f"ds_read_b128 {vr(V_WV+4*f,4)}, v1 offset:{8192+f*1024}")
    a("s_waitcnt lgkmcnt(8)")
    for t in range(2):
        for s in range(4):
            c = "0" if s == 0 else vr(V_PACC + 16 * t, 16)
            a(f"v_mfma_f32_32x32x16_bf16 {vr(V_PACC+16*t,16)}, {vr(V_XF+4*s,4)}, {vr(V_WB+16*t+4*s,4)}, {c}")
    for f in range(8):
        a(f"ds_read_b128 {vr(V_WB+4*f,4)}, v1 offset:{f*1024}")
    a(f"""
    s_lshl_b32 s{T+2}, s{T+3}, 13           ; tile*32*256
    s_cmp_eq_u32 s{T+1}, 0
    s_cselect_b32 s{T+5}, {L_XA}, {L_AG}
    s_cselect_b32 s{T+6}, s{S_C}, s{S_ONE}
    s_mov_b32 s{T+7}, s{T+6}
    s_add_u32 s{T+2}, s{T+2}, s{T+5}
    v_lshlrev_b32 v2, 12, v6                ; h*16*256
    v_add3_u32 v2, v2, v{V_COL}, s{T+2}
    s_nop 7
    """)
    for i in range(16):
        a(f"v_pk_mul_f32 {vr(V_PACC+2*i,2)}, {vr(V_PACC+2*i,2)}, s[{T+6}:{T+7}]")
    a(f"""
    s_cmp_eq_u32 s{T+3}, 3
    s_cbranch_scc1 K2_T3
    """)
    for t in range(2):
        for rr in range(16):
            row = 8 * (rr & 1) + (rr >> 1)
            a(f"ds_write_b32 v2, v{V_PACC+16*t+rr} offset:{row*256+128*t}")
    a(f"""
    s_branch K2_NOINIT
K2_T3:
    s_mov_b32 exec_hi, 0
    """)
    for t in range(2):
        for rr in (0, 2):
            row = 8 * (rr & 1) + (rr >> 1)
            a(f"ds_write_b32 v2, v{V_PACC+16*t+rr} offset:{row*256+128*t}")
    a(f"""
    s_mov_b64 exec, -1
K2_NOINIT:
    s_mov_b32 s{S_FIRST}, 0
    """)
    for s in range(4):
        a(f"v_xor_b32 v{V_RD+s}, {s<<5}, v{V_T1}\nv_add_u32 v{V_RD+s}, s{S_GB}, v{V_RD+s}")
    a(f"""
    v_lshlrev_b32 v1, 3, v{V_LANE}
    v_add_u32 v1, {L_CNT}, v1
    s_waitcnt lgkmcnt(0)
    s_barrier
    """)
    stamp()
    a(f"""
    ds_read_b64 v[2:3], v1
    s_waitcnt lgkmcnt(0)
    v_add_u32 v2, {7<<12}, v2
    v_add_u32 v3, {7<<12}, v3
    v_lshrrev_b32 v2, 15, v2
    v_lshrrev_b32 v3, 15, v3
    v_add_u32 v4, v2, v3
    v_mov_b32 v5, v4
    """)
    scan64(a, 5)
    a(f"""
    v_sub_u32 v6, v5, v4
    v_readlane_b32 s{T}, v5, 63             ; G
    v_add_u32 v7, v6, v2
    v_lshlrev_b32 v6, 15, v6
    v_lshlrev_b32 v7, 15, v7
    ds_write_b64 v1, v[6:7] offset:512
    s_cmp_le_u32 s{T}, 512
    s_cbranch_scc1 K2_CAPOK
    s_mov_b32 s{S_WIN}, 8
    s_waitcnt lgkmcnt(0)
    s_barrier
    s_branch K2_ROUND
K2_CAPOK:
    """)
    for k in range(16):
        a(f"""
        s_mov_b64 exec, s[{S_MSK+2*k}:{S_MSK+2*k+1}]
        ds_read_b32 v{16+k}, v{16+k} offset:512
        """)
    a(f"""
    s_mov_b64 exec, -1
    s_add_u32 s{T}, s{T}, 15
    s_lshr_b32 s{T}, s{T}, 4                ; Lp
    s_max_u32 s{T}, s{T}, 1
    s_add_u32 s{T+1}, s{T}, 1
    s_lshr_b32 s{T+1}, s{T+1}, 1            ; n1
    s_sub_u32 s{T+2}, s{T}, s{T+1}          ; n2
    s_cmp_eq_u32 s{S_SEC}, 0
    s_cselect_b32 s{S_N}, s{T+1}, s{T+2}
    s_cselect_b32 s{S_KK0}, 0, s{T+1}
    v_cvt_f32_u32 v2, s{T}
    v_rcp_f32 v2, v2
    s_lshl_b32 s{T+3}, s{T}, 6
    s_sub_u32 s{S_DD}, 2048, s{T+3}
    v_mul_f32 v2, 0x48000000, v2            ; 2^17
    v_cvt_u32_f32 v2, v2
    v_add_u32 v2, 1, v2
    s_nop 0
    v_readfirstlane_b32 s{S_M}, v2
    v_lshrrev_b32 v3, 4, v{V_LANE}
    v_and_b32 v4, 15, v{V_LANE}
    s_lshl_b32 s{T+4}, s{S_P}, 3
    s_add_u32 s{T+4}, s{T+4}, s{S_SEC}
    v_lshl_add_u32 v5, v3, 1, s{T+4}        ; o
    v_lshlrev_b32 v6, 8, v5
    v_add_u32 v6, {SPILL0}, v6
    v_lshl_add_u32 v7, v4, 4, v6
    v_mov_b32 v32, 0
    v_mov_b32 v33, 0
    v_mov_b32 v34, 0
    v_mov_b32 v35, 0
    ds_write_b128 v7, v[32:35] offset:{L_AG}
    s_waitcnt lgkmcnt(1)
    """)
    for k in range(16):
        r = V_REC + 4 * k
        a(f"""
        s_mov_b64 exec, s[{S_MSK+2*k}:{S_MSK+2*k+1}]
        s_cbranch_execz K2_SC{k}
        v_add_u32 v{r+3}, v{16+k}, v{r+3}
        v_mul_hi_u32_u24 v{16+k}, s{S_M}, v{r+3}
        v_lshrrev_b32 v{r+3}, 9, v{r+3}
        v_mad_u32_u24 v{r+3}, v{16+k}, s{S_DD}, v{r+3}
        v_lshrrev_b32 v{16+k}, 1, v{r+3}
        v_add_u32 v{r+3}, {L_RE}, v{r+3}
        v_add_u32 v{16+k}, {L_RW}, v{16+k}
        ds_write_b64 v{r+3}, {vr(r,2)}
        ds_write_b32 v{16+k}, v{r+2}
K2_SC{k}:
        """)
    a(f"""
    s_mov_b64 exec, -1
    s_lshl_b32 s{T}, s{S_P}, 10             ; 4P*256 slots
    s_lshl_b32 s{T+1}, s{S_KK0}, 3
    s_add_u32 s{T}, s{T}, s{T+1}
    s_lshl_b32 s{T+1}, s{T}, 3
    s_add_u32 s{T+1}, s{T+1}, {L_RE}
    s_lshl_b32 s{T+2}, s{T}, 2
    s_add_u32 s{T+2}, s{T+2}, {L_RW}
    s_add_u32 s{T+3}, s{T+2}, 2
    v_add_u32 v{V_ARE}, s{T+1}, v{V_ARE}
    v_add_u32 v{V_AIDX}, s{T+2}, v{V_AIDX}
    v_add_u32 v{V_AGM}, s{T+3}, v{V_AGM}
    v_lshlrev_b32 v8, 10, v3
    v_add_u32 v8, s{T+3}, v8
    v_lshl_add_u32 v9, v4, 5, v8            ; group k
    s_waitcnt lgkmcnt(0)
    s_barrier
    """)
    stamp()
    a(f"""
    s_cmp_eq_u32 s{S_N}, 0
    s_cbranch_scc1 K2_DONE
    """)
    for l in idx_reads(0): a(l)
    a(f"""
    ds_read_u16 v10, v8
    ds_read_u16 v11, v9
    s_waitcnt lgkmcnt(2)
    """)
    for l in dma_issue(): a(l)
    for l in idx_reads(32): a(l)
    a(f"""
    s_waitcnt lgkmcnt(4)
    v_lshl_add_u32 v12, v4, 4, v10
    ds_read_b128 v[32:35], v12 offset:{L_XA}
    v_cmp_eq_u32 vcc, v10, v11
    v_cmp_gt_u32 s[{T}:{T+1}], s{S_N}, v4
    s_and_b64 exec, vcc, s[{T}:{T+1}]
    ds_write_b16 v9, v6
    v_cmp_eq_u32 vcc, 0, v4
    v_lshrrev_b32 v13, 5, v10
    v_add_u32 v13, {L_SP}, v13
    v_add_u32 v14, 1, v5
    s_mov_b64 exec, vcc
    ds_min_u32 v13, v5
    ds_max_u32 v13, v14 offset:4
    s_mov_b64 exec, -1
    s_waitcnt lgkmcnt(3)
    ds_write_b128 v7, v[32:35] offset:{L_XA}
    """)
    for l in gm_reads(V_ADR[0], 0): a(l)
    a("s_waitcnt vmcnt(0)")
    for l in frag_reads(V_F[0], V_E[0], 0): a(l)
    a("s_waitcnt lgkmcnt(5)")
    for l in gm_adds(V_ADR[0]): a(l)
    for l in xa_reads(V_ADR[0], V_XA0, V_PV0, 0): a(l)
    a(f"""
    s_waitcnt lgkmcnt(4)
    s_cmp_lt_u32 s{S_N}, 2
    s_cbranch_scc1 K2_ND
    """)
    for l in dma_issue(): a(l)
    a("K2_ND:")
    for l in mfmas(V_Z0, V_H0, 0, V_F[0], V_E[0]): a(l)
    a(f"""
    s_mov_b32 s{S_T}, 0
    s_nop 7
    s_nop 3
    s_waitcnt lgkmcnt(0)
    """)
    stamp()
    a(f"""
    s_cmp_lg_u32 s{S_SAFE}, 0
    s_cbranch_scc1 K2S_LOOP
    .p2align 6
K2F_LOOP:
    """)
    for l in gen_loop("K2F", valu_fast): a(l)
    a(f"""
K2F_EXIT:
    s_branch K2_DONE
K2S_LOOP:
    """)
    for l in gen_loop("K2S", valu_safe): a(l)
    a(f"""
K2S_EXIT:
K2_DONE:
    """)
    a("s_waitcnt vmcnt(0) lgkmcnt(0)")
    stamp()
    a(f"""
    ; (l)
    v_mov_b32 v1, 0x7b800000                ; 2^120
    v_cmp_lt_f32 vcc, v1, v{V_MAXD}
    v_lshrrev_b32 v2, 3, v0
    v_and_b32 v3, 7, v0
    s_cbranch_vccz K2_NOOVF
    v_mov_b32 v1, {L_FLG}
    v_mov_b32 v4, 1
    ds_write_b32 v1, v4 offset:4
K2_NOOVF:
    v_lshlrev_b32 v4, 5, v3                 ; f8*32
    v_lshl_add_u32 v5, v2, 8, v4
    v_add_u32 v5, {L_AG}, v5
    v_lshlrev_b32 v6, 3, v2
    v_add_u32 v6, {L_SP}, v6
    v_add_u32 v4, {L_AG+SPILL0}, v4
    v_mov_b32 v1, {L_FLG}
    s_waitcnt lgkmcnt(0)
    s_barrier
    """)
    stamp()
    a(f"""
    ds_read_b32 v7, v1
    ds_read_b64 v[8:9], v6
    ds_read_b64 v[10:11], v6 offset:512
    ds_read_b128 v[16:19], v5
    ds_read_b128 v[20:23], v5 offset:16
    ds_read_b128 v[24:27], v5 offset:16384
    ds_read_b128 v[28:31], v5 offset:16400
    v_cmp_gt_u32 s[{T+4}:{T+5}], 34, v2
    s_waitcnt lgkmcnt(4)
    v_readfirstlane_b32 s{T+6}, v7
    v_cndmask_b32 v11, 0, v11, s[{T+4}:{T+5}]
K2_MRG:
    v_cmp_lt_u32 s[{T}:{T+1}], v8, v9
    v_cmp_lt_u32 s[{T+2}:{T+3}], v10, v11
    s_or_b64 vcc, s[{T}:{T+1}], s[{T+2}:{T+3}]
    s_cbranch_scc0 K2_MRGD
    v_lshl_add_u32 v12, v8, 8, v4
    v_lshl_add_u32 v13, v10, 8, v4
    s_mov_b64 exec, s[{T}:{T+1}]
    ds_read_b128 v[32:35], v12
    ds_read_b128 v[36:39], v12 offset:16
    s_mov_b64 exec, s[{T+2}:{T+3}]
    ds_read_b128 v[40:43], v13
    ds_read_b128 v[44:47], v13 offset:16
    s_mov_b64 exec, s[{T}:{T+1}]
    v_add_u32 v8, 1, v8
    s_waitcnt lgkmcnt(2)
    """)
    for i in range(4): a(f"v_pk_add_f32 {vr(16+2*i,2)}, {vr(16+2*i,2)}, {vr(32+2*i,2)}")
    a(f"""
    s_mov_b64 exec, s[{T+2}:{T+3}]
    v_add_u32 v10, 1, v10
    s_waitcnt lgkmcnt(0)
    """)
    for i in range(4): a(f"v_pk_add_f32 {vr(24+2*i,2)}, {vr(24+2*i,2)}, {vr(40+2*i,2)}")
    a(f"""
    s_mov_b64 exec, -1
    s_branch K2_MRG
K2_MRGD:
    s_waitcnt lgkmcnt(0)
    s_cmp_eq_u32 s{T+6}, 0
    s_cbranch_scc1 K2_OUT
    ds_write_b128 v5, v[16:19]
    ds_write_b128 v5, v[20:23] offset:16
    s_mov_b64 exec, s[{T+4}:{T+5}]
    ds_write_b128 v5, v[24:27] offset:16384
    ds_write_b128 v5, v[28:31] offset:16400
    s_mov_b64 exec, -1
    s_add_u32 s{S_J0}, s{S_J0}, s{S_WIN}
    s_waitcnt lgkmcnt(0)
    s_barrier
    s_branch K2_ROUND
K2_OUT:
    v_lshlrev_b32 v12, 8, v2
    v_add_u32 v12, s2, v12                  ; node
    v_lshlrev_b32 v13, 4, v3
    v_mov_b32 v14, 0
    """)
    def silu(base, tmp):
        for i in range(4): a(f"v_pk_mul_f32 {vr(tmp+2*i,2)}, {vr(base+2*i,2)}, {sr(S_C,2)}")
        for i in range(8): a(f"v_exp_f32 v{tmp+i}, v{tmp+i}")
        for i in range(8): a(f"v_fma_f32 v14, v{base+i}, 0, v14")
        for i in range(4): a(f"v_pk_add_f32 {vr(tmp+2*i,2)}, {vr(tmp+2*i,2)}, {sr(S_ONE,2)}")
        for i in range(8): a(f"v_rcp_f32 v{tmp+i}, v{tmp+i}")
        a("s_nop 0")
        for i in range(4): a(f"v_pk_mul_f32 {vr(tmp+2*i,2)}, {vr(tmp+2*i,2)}, {vr(base+2*i,2)}")
        for i in range(4): a(f"v_cvt_pk_bf16_f32 v{base+i}, v{tmp+2*i}, v{tmp+2*i+1}")
    silu(16, 32)
    a(f"""
    buffer_store_dwordx4 v[16:19], v[12:13], {sr(S_OUT,4)}, 0 idxen offen
    s_mov_b64 exec, s[{T+4}:{T+5}]
    s_cbranch_execz K2_OUT2
    v_add_u32 v10, {64*256}, v12
    v_mov_b32 v11, v13
    """)
    silu(24, 40)
    a(f"""
    buffer_store_dwordx4 v[24:27], v[10:11], {sr(S_OUT,4)}, 0 idxen offen
K2_OUT2:
    s_mov_b64 exec, -1
    s_cmp_lg_u32 s{S_SAFE}, 0
    s_cbranch_scc1 K2_FIN
    v_cmp_u_f32 vcc, v14, v14
    s_nop 4
    s_cbranch_vccz K2_NONAN
    v_mov_b32 v4, 1
    ds_write_b32 v1, v4 offset:4
K2_NONAN:
    s_waitcnt lgkmcnt(0)
    s_barrier
    ds_read_b32 v7, v1 offset:4
    s_waitcnt lgkmcnt(0)
    v_readfirstlane_b32 s{T}, v7
    s_cmp_eq_u32 s{T}, 0
    s_cbranch_scc1 K2_FIN
    s_mov_b32 s{S_SAFE}, 1
    s_waitcnt vmcnt(0)
    s_barrier
    s_branch K2_START
K2_FIN:
    """)
    if OPT["stamps"]:
        stamp()
        a("s_waitcnt vmcnt(0)")
        stamp()
        a(f"""
        s_load_dwordx2 s[4:5], s[0:1], 72
        s_lshl_b32 s{T}, s2, 3
        s_add_u32 s{T}, s{T}, s{S_W}
        s_lshl_b32 s{T}, s{T}, 6
        s_add_u32 s{T}, s{T}, {WS_DBG + 0x10000}
        v_mov_b32 v1, s{T}
        s_waitcnt lgkmcnt(0)
        """)
        for i in range(nst[0]):
            a(f"v_mov_b32 v2, s{S_ST+2*i}\nglobal_store_dword v1, v2, s[4:5] offset:{4*i}")
        a(f"v_mov_b32 v2, s{S_N}\nglobal_store_dword v1, v2, s[4:5] offset:60")
    a("""
K2_END:
    s_endpgm
    """)
    return a.text()

HEADER = open("standalone__edge_featured_mpnn_egc__graph.s.ref").read().split("; Override launch")[0]

def main():
    out = HEADER
    out += f"; @launch kernel=egc_bin_kernel grid=(256,1,1) block=({K1_BLOCK},1,1) lds={K1_LDS}\n"
    out += f"; @launch kernel=egc_main_kernel grid=(256,1,1) block=(512,1,1) lds={K2_LDS}\n"
    out += '.amdgcn_target "amdgcn-amd-amdhsa--gfx950"\n'
    out += khead("egc_bin_kernel") + gen_k1()
    out += khead("egc_main_kernel") + gen_k2()
    out += kd("egc_bin_kernel", 56, 80)
    out += kd("egc_main_kernel", 256, 102)
    open(sys.argv[1], "w").write(out)

main()
```

```python
import sys, re

N = 25000
E = 800000
NCH = 250
CH = 3200
WS_WF = 0
WS_TAB = 0x10000
WS_REC = 0x100000
WS_DBG = 0x4000000

OPT = dict(stamps=0, prio=1, npl=8, lead=2, gaps=[1,2,3,5,9,3], nodma=0, nolds=0, pfm=384, pfr=1, pfx=1, k1nt=1, k1x=1)
if __name__ == "__main__":
    for a in sys.argv[2:]:
        k, v = a.split("=")
        OPT[k] = [int(x) for x in v.split(',')] if ',' in v else int(v)

def MT(): return 's_memrealtime' if OPT['stamps'] == 2 else 's_memtime'

class A:
    def __init__(self):
        self.l = []
    def __call__(self, s):
        for x in s.strip("\n").split("\n"):
            self.l.append(x if x.strip().endswith(":") and not x.startswith(" ") else "    " + x.strip())
    def label(self, s):
        self.l.append(s + ":")
    def text(self):
        return "\n".join(self.l) + "\n"

def vr(a, n=1):
    return f"v{a}" if n == 1 else f"v[{a}:{a+n-1}]"
def sr(a, n=1):
    return f"s{a}" if n == 1 else f"s[{a}:{a+n-1}]"

def scan64(a, v):
    for sh in (1, 2, 4, 8):
        a(f"s_nop 1\nv_add_u32_dpp v{v}, v{v}, v{v} row_shr:{sh} row_mask:0xf bank_mask:0xf")
    a(f"s_nop 1\nv_add_u32_dpp v{v}, v{v}, v{v} row_bcast:15 row_mask:0xa bank_mask:0xf")
    a(f"s_nop 1\nv_add_u32_dpp v{v}, v{v}, v{v} row_bcast:31 row_mask:0xc bank_mask:0xf")

def kd(name, vgpr, sgpr):
    acc = (vgpr + 3) // 4 * 4
    return f""".section .rodata,"a"
.p2align 6
.amdhsa_kernel {name}
  .amdhsa_next_free_vgpr {vgpr}
  .amdhsa_next_free_sgpr {sgpr}
  .amdhsa_accum_offset {acc}
  .amdhsa_group_segment_fixed_size 0
  .amdhsa_kernarg_size 80
  .amdhsa_user_sgpr_count 2
  .amdhsa_user_sgpr_kernarg_segment_ptr 1
  .amdhsa_system_sgpr_workgroup_id_x 1
.end_amdhsa_kernel
"""

def khead(name):
    return f""".text
.globl {name}
.p2align 8
.type {name},@function
{name}:
"""

K1_HIST = 0
K1_OFFS = 1024
K1_STAGE = 4096
K1_LDS = K1_STAGE + CH * 12
K1_BLOCK = 832

def gen_k1():
    a = A()
    nst = [0]
    def stamp():
        if OPT["stamps"]:
            a(f"{MT()} s[{60+2*nst[0]}:{61+2*nst[0]}]\ns_waitcnt lgkmcnt(0)")
            nst[0] += 1
    a("""
    s_cmp_ge_u32 s2, 256
    s_cbranch_scc1 K1_END
    s_load_dwordx4 s[4:7], s[0:1], 8
    s_load_dwordx2 s[8:9], s[0:1], 24       ; dst
    s_load_dwordx2 s[10:11], s[0:1], 72     ; ws
    s_load_dwordx2 s[24:25], s[0:1], 0      ; x
    s_cmp_ge_u32 s2, 250
    s_cbranch_scc1 K1_MISC
    """)
    if OPT["stamps"]: a("s_memrealtime s[56:57]")
    stamp()
    NT = " nt" if OPT["k1nt"] else ""
    XT = "global_load_dwordx4 v[56:59], v5, s[24:25]" if OPT["k1x"] else ""
    X1 = OPT["k1x"]
    a(f"""
    v_lshlrev_b32 v1, 2, v0                 ; t*4
    v_mov_b32 v2, 0
    ds_write_b32 v1, v2
    v_lshlrev_b32 v3, 3, v0                 ; t*8
    v_add_u32 v4, {CH//2*4}, v3
    v_lshlrev_b32 v5, 4, v0                 ; t*16
    v_add_u32 v6, {CH//2*8}, v5
    s_mul_i32 s12, s2, {CH*4}
    s_mul_i32 s13, s2, {CH*8}
    s_mov_b32 s20, 0x050c0100
    v_cmp_gt_u32 vcc, {CH//4}, v0
    s_waitcnt lgkmcnt(0)
    s_add_u32 s8, s8, s12
    s_addc_u32 s9, s9, 0
    s_add_u32 s6, s6, s12
    s_addc_u32 s7, s7, 0
    s_add_u32 s4, s4, s13
    s_addc_u32 s5, s5, 0
    s_and_saveexec_b64 s[22:23], vcc
    global_load_dwordx2 v[8:9], v3, s[8:9]{NT}
    global_load_dwordx2 v[10:11], v4, s[8:9]{NT}
    v_mov_b32 v7, 1
    v_mov_b32 v2, 2
    s_add_u32 s24, s24, s12
    s_addc_u32 s25, s25, 0
    s_barrier
    global_load_dwordx2 v[12:13], v3, s[6:7]{NT}
    global_load_dwordx2 v[14:15], v4, s[6:7]{NT}
    global_load_dwordx4 v[16:19], v5, s[4:5]{NT}
    global_load_dwordx4 v[20:23], v6, s[4:5]{NT}
    s_waitcnt vmcnt(4)
    """)
    for i in range(4):
        a(f"v_lshlrev_b32_sdwa v{24+i}, v2, v{8+i} dst_sel:DWORD dst_unused:UNUSED_PAD src0_sel:DWORD src1_sel:BYTE_0")
    for i in range(4):
        a(f"ds_add_rtn_u32 v{28+i}, v{24+i}, v7")
    a(XT)
    a("""
    s_mov_b64 exec, -1
    v_mbcnt_lo_u32_b32 v32, -1, 0
    v_mbcnt_hi_u32_b32 v32, -1, v32         ; lane
    v_lshlrev_b32 v33, 4, v32
    s_waitcnt lgkmcnt(0)
    s_barrier
    """)
    stamp()
    a(f"""
    ds_read_b128 v[36:39], v33 offset:{K1_HIST}
    v_lshrrev_b32 v34, 6, v0
    s_nop 0
    v_readfirstlane_b32 s14, v34
    s_waitcnt lgkmcnt(0)
    v_add_u32 v40, v36, v37
    v_add_u32 v41, v40, v38
    v_add_u32 v42, v41, v39
    v_mov_b32 v43, v42
    """)
    scan64(a, 43)
    a(f"""
    v_sub_u32 v44, v43, v42                 ; exclusive
    v_add_u32 v45, v44, v36
    v_add_u32 v46, v44, v40
    v_add_u32 v47, v44, v41
    v_mul_u32_u24 v48, 12, v44
    v_mul_u32_u24 v49, 12, v45
    v_mul_u32_u24 v50, 12, v46
    v_mul_u32_u24 v51, 12, v47
    ds_write_b128 v33, v[48:51] offset:{K1_OFFS}
    s_mov_b64 exec, vcc
    """)
    for i in range(4):
        a(f"ds_read_b32 v{24+i}, v{24+i} offset:{K1_OFFS}")
    a(f"""
    s_waitcnt vmcnt({X1})
    v_perm_b32 v12, v8, v12, s20
    v_perm_b32 v13, v9, v13, s20
    v_perm_b32 v14, v10, v14, s20
    v_perm_b32 v15, v11, v15, s20
    s_cmp_ge_u32 s14, 4
    s_cbranch_scc1 K1_NOTAB
    s_mul_i32 s15, s2, {CH}
    s_cmp_eq_u32 s14, 1
    s_cbranch_scc1 K1_T1
    s_cmp_eq_u32 s14, 2
    s_cbranch_scc1 K1_T2
    s_cmp_eq_u32 s14, 3
    s_cbranch_scc1 K1_T3
    v_mov_b32 v52, v44
    v_mov_b32 v53, v36
    s_branch K1_TW
K1_T1:
    v_mov_b32 v52, v45
    v_mov_b32 v53, v37
    s_branch K1_TW
K1_T2:
    v_mov_b32 v52, v46
    v_mov_b32 v53, v38
    s_branch K1_TW
K1_T3:
    v_mov_b32 v52, v47
    v_mov_b32 v53, v39
K1_TW:
    v_add_u32 v52, s15, v52
    v_lshl_or_b32 v52, v52, 12, v53
    s_lshl_b32 s16, s14, 10
    s_lshl_b32 s17, s2, 2
    s_add_u32 s16, s16, s17
    s_add_u32 s16, s16, {WS_TAB}
    v_lshlrev_b32 v53, 12, v32
    v_add_u32 v53, s16, v53
    global_store_dword v53, v52, s[10:11]
K1_NOTAB:
    s_waitcnt lgkmcnt(0)
    """)
    for i in range(4):
        a(f"v_mad_u32_u24 v{24+i}, v{28+i}, 12, v{24+i}")
    for i in range(4):
        e0 = 16 + 2 * i
        a(f"v_add_u32 v{24+i}, {K1_STAGE}, v{24+i}")
    for i in range(4):
        e0 = 16 + 2 * i
        a(f"ds_write2_b32 v{24+i}, v{e0}, v{e0+1} offset0:0 offset1:1")
        a(f"ds_write_b32 v{24+i}, v{12+i} offset:8")
    a(f"""
    s_mul_i32 s12, s2, {CH*12}
    s_add_u32 s12, s12, {WS_REC}
    s_add_u32 s10, s10, s12
    s_addc_u32 s11, s11, 0
    v_add_u32 v6, {CH*4}, v5
    v_add_u32 v7, {CH*8}, v5
    s_waitcnt lgkmcnt(0)
    s_barrier
    """)
    stamp()
    a(f"""
    ds_read_b128 v[8:11], v5 offset:{K1_STAGE}
    ds_read_b128 v[12:15], v5 offset:{K1_STAGE+CH*4}
    ds_read_b128 v[16:19], v5 offset:{K1_STAGE+CH*8}
    s_waitcnt lgkmcnt(2)
    global_store_dwordx4 v5, v[8:11], s[10:11]
    s_waitcnt lgkmcnt(1)
    global_store_dwordx4 v6, v[12:15], s[10:11]
    s_waitcnt lgkmcnt(0)
    global_store_dwordx4 v7, v[16:19], s[10:11]
    """)
    if OPT["stamps"]:
        stamp()
        a("s_waitcnt vmcnt(0)")
        a("s_memrealtime s[58:59]")
        stamp()
        a(f"""
        s_cmp_lg_u32 s14, 0
        s_cbranch_scc1 K1_END
        s_load_dwordx2 s[10:11], s[0:1], 72
        s_lshl_b32 s12, s2, 6
        s_add_u32 s12, s12, {WS_DBG}
        v_mov_b32 v1, s12
        s_waitcnt lgkmcnt(0)
        """)
        for i in range(nst[0]):
            a(f"v_mov_b32 v2, s{60+2*i}\nglobal_store_dword v1, v2, s[10:11] offset:{4*i}")
        a("v_mov_b32 v2, s56\nglobal_store_dword v1, v2, s[10:11] offset:48\nv_mov_b32 v2, s58\nglobal_store_dword v1, v2, s[10:11] offset:52")
    a("""
    s_endpgm
K1_MISC:
    s_load_dwordx4 s[12:15], s[0:1], 32     ; u_w, v_w
    s_load_dwordx2 s[16:17], s[0:1], 48     ; g_w
    v_lshrrev_b32 v1, 6, v0
    v_mbcnt_lo_u32_b32 v2, -1, 0
    v_mbcnt_hi_u32_b32 v2, -1, v2           ; lane
    v_readfirstlane_b32 s18, v1             ; wave
    s_waitcnt lgkmcnt(0)
    """)
    a(f"""
    s_cmp_ge_u32 s18, 4
    s_cbranch_scc1 K1_M1
    s_lshl_b32 s19, s2, 2
    s_add_u32 s19, s19, {WS_TAB}
    v_lshlrev_b32 v3, 10, v0
    v_add_u32 v3, s19, v3
    v_mov_b32 v4, 0
    global_store_dword v3, v4, s[10:11]
K1_M1:
    s_sub_u32 s19, s2, 250
    s_mul_i32 s19, s19, 13
    s_add_u32 s19, s19, s18
    s_cmp_ge_u32 s19, 34
    s_cbranch_scc1 K1_END
    v_and_b32 v3, 31, v2                    ; n
    v_lshrrev_b32 v4, 5, v2                 ; h
    s_mov_b32 s27, 0xbfb8aa3b
    s_cmp_ge_u32 s19, 32
    s_cbranch_scc1 K1_MC
    s_lshr_b32 s20, s19, 3                  ; matrix 0:B 1:V 2:A 3:U
    s_bfe_u32 s21, s19, 0x10002             ; t
    s_and_b32 s22, s19, 3                   ; s
    s_cmp_eq_u32 s20, 1
    s_cselect_b32 s24, s14, s16
    s_cselect_b32 s25, s15, s17
    s_cmp_eq_u32 s20, 3
    s_cselect_b32 s24, s12, s24
    s_cselect_b32 s25, s13, s25
    s_cmp_eq_u32 s20, 0
    s_cselect_b32 s23, 8192, 0
    s_cselect_b32 s27, s27, 1.0
    s_lshl_b32 s26, s22, 11                 ; s*16 rows*128 B
    s_add_u32 s23, s23, s26
    s_lshl_b32 s26, s21, 1                  ; column 2n+t
    s_add_u32 s23, s23, s26
    v_lshlrev_b32 v5, 10, v4                ; h*8 rows*128
    v_lshl_add_u32 v5, v3, 2, v5
    v_add_u32 v5, s23, v5
    """)
    for j in range(8):
        a(f"global_load_ushort v{8+j}, v5, s[24:25] offset:{128*j}")
    a(f"""
    s_lshl_b32 s26, s19, 10
    v_lshlrev_b32 v6, 4, v2
    v_add_u32 v6, s26, v6
    s_waitcnt vmcnt(0)
    """)
    for j in range(8):
        a(f"v_lshlrev_b32 v{8+j}, 16, v{8+j}\nv_mul_f32 v{8+j}, s27, v{8+j}")
    for j in range(4):
        a(f"v_cvt_pk_bf16_f32 v{16+j}, v{8+2*j}, v{9+2*j}")
    a(f"""
    global_store_dwordx4 v6, v[16:19], s[10:11]
    s_endpgm
K1_MC:
    s_sub_u32 s21, s19, 32                  ; t
    s_lshl_b32 s26, s21, 1
    s_add_u32 s23, s26, {128*128}
    v_lshlrev_b32 v5, 2, v3
    v_add_u32 v5, s23, v5
    """)
    for j in range(4):
        a(f"global_load_ushort v{8+j}, v5, s[16:17] offset:{128*j}")
    a(f"""
    s_lshl_b32 s26, s21, 9
    s_add_u32 s26, s26, 32768
    v_lshlrev_b32 v6, 3, v2
    v_add_u32 v6, s26, v6
    v_cmp_gt_u32 vcc, 32, v2
    s_waitcnt vmcnt(0)
    """)
    for j in range(4):
        a(f"v_lshlrev_b32 v{8+j}, 16, v{8+j}\nv_mul_f32 v{8+j}, s27, v{8+j}")
    a("""
    v_cvt_pk_bf16_f32 v16, v8, v9
    v_cvt_pk_bf16_f32 v17, v10, v11
    v_lshlrev_b32 v12, 16, v16
    v_and_b32 v13, 0xffff0000, v16
    v_lshlrev_b32 v14, 16, v17
    v_and_b32 v15, 0xffff0000, v17
    v_sub_f32 v8, v8, v12
    v_sub_f32 v9, v9, v13
    v_sub_f32 v10, v10, v14
    v_sub_f32 v11, v11, v15
    v_cvt_pk_bf16_f32 v18, v8, v9
    v_cvt_pk_bf16_f32 v19, v10, v11
    v_cndmask_b32 v16, v18, v16, vcc
    v_cndmask_b32 v17, v19, v17, vcc
    global_store_dwordx2 v6, v[16:17], s[10:11]
K1_END:
    s_endpgm
    """)
    return a.text()

NROW = 131
L_XA = 0
L_AG = NROW * 256
L_GB = 2 * NROW * 256
L_RW = L_GB + 32768
L_RE = L_RW + 16384
L_CNT = L_RE + 32768
L_NOFF = L_CNT + 512
L_SP = L_NOFF + 512
L_FLG = L_SP + 1088
K2_LDS = L_FLG + 64
DUMMY = 130 * 256
SPILL0 = 98 * 256
NULLW = 0xFFFF | (DUMMY << 16)

V_TAB = 8
V_LANE, V_MAXD = 36, 37
V_ARE, V_AIDX, V_AGM, V_COL = 38, 39, 40, 41
V_ADR = [42, 44]
V_PV = [46, 48]
V_RES = [50, 52]
V_N, V_D, V_R = 54, 56, 58
V_T0, V_T1, V_PF = 60, 61, 62
V_Z0, V_H0, V_Z1, V_H1 = 64, 80, 96, 112
V_REC = 64
V_WB, V_WV = 128, 160
V_WC = [192, 196]
V_F = [200, 216]
V_XF = 200
V_PACC = 216
V_E = [232, 236]
V_IDX = 240
V_RD = 248

S_XG = 4
S_X = 8
S_OUT = 12
S_WS = 16
S_W, S_P, S_SEC, S_FIRST, S_SAFE, S_J0, S_WIN, S_N, S_T, S_GB = 20, 21, 22, 23, 24, 25, 26, 27, 28, 29
S_C = 30
S_ONE = 32
S_KK0, S_M, S_DD, S_B = 34, 35, 36, 37
S_TMP = 38
S_MSK = 48
S_ST = 80

REG = re.compile(r"v\[(\d+):(\d+)\]|v(\d+)")
def regs_of(op):
    out = []
    for m in REG.finditer(op):
        if m.group(3) is not None: out.append({int(m.group(3))})
        else: out.append(set(range(int(m.group(1)), int(m.group(2)) + 1)))
    return out

def rw_sets(line):
    s = line.strip()
    op = s.split()[0]
    r = regs_of(s[len(op):])
    if op.startswith("ds_read"): return set().union(*r[1:]), r[0]
    if op.startswith("ds_write"): return set().union(*r), set()
    if op.startswith("buffer_load") and " lds" in s: return set().union(*r), set()
    if op.startswith("v_"):
        rd = set().union(*r[1:]) if len(r) > 1 else set()
        if op.startswith("v_fmac"): rd = rd | r[0]
        return rd, r[0]
    return set(), set()

def add_lgkm_waits(body):
    n = len(body)
    need = [None] * n
    pend = []
    for rnd in range(3):
        for i, line in enumerate(body):
            s = line.strip()
            if s.startswith("@WAITREGS"):
                rd = set().union(*regs_of(s)); wr = set()
            else:
                rd, wr = rw_sets(s)
            touch = rd | wr
            idx = -1
            for k, d in enumerate(pend):
                if d & touch: idx = k
            if idx >= 0:
                w = min(len(pend) - 1 - idx, 15)
                need[i] = w if need[i] is None else min(need[i], w)
            if need[i] is not None:
                pend = pend[len(pend) - need[i]:] if need[i] > 0 else []
            if s.startswith("ds_"):
                pend.append(wr)
    out = []
    for i, line in enumerate(body):
        if need[i] is not None: out.append(f"s_waitcnt lgkmcnt({need[i]})")
        if not line.strip().startswith("@"): out.append(line)
    return out

TRANS = ("v_exp_f32", "v_rcp_f32")
def check_hazards(body, name):
    ins = [l.strip() for l in body if not (l.strip().endswith(":") or l.strip().startswith(";"))]
    n = len(ins)
    for i in range(n):
        s = ins[i]
        op = s.split()[0]
        rd_i, wr_i = rw_sets(s)
        dist = 0
        for k in range(1, 24):
            s2 = ins[(i + k) % n]
            op2 = s2.split()[0]
            rd, wr = rw_sets(s2)
            req = 0
            if op.startswith("v_mfma"):
                if op2.startswith("v_mfma"):
                    r2 = regs_of(s2[len(op2):])
                    if wr_i & (r2[1] | r2[2]): req = 12
                    if len(r2) > 3 and (wr_i & r2[3]) and wr_i != r2[3]: req = 10
                elif (rd | wr) & wr_i: req = 12
                r1 = regs_of(s[len(op):])
                if len(r1) > 3 and op2.startswith("v_") and not op2.startswith("v_mfma") and (wr & r1[3]): req = max(req, 7)
            elif op in TRANS:
                if op2.startswith("v_") and op2 not in TRANS and (rd & wr_i): req = 1
                if op2.startswith("v_mfma") and (rd & wr_i): req = 2
            elif op.startswith("v_"):
                if op2.startswith("v_mfma") and (rd & wr_i): req = 2
                if "sdwa" in op and op2.startswith("v_") and ((rd | wr) & wr_i): req = max(req, 0)
            elif op.startswith("s_") and " m0," in s:
                if " lds" in s2: req = 1
            if dist < req:
                raise SystemExit(f"hazard in {name}: '{s}' -> '{s2}' dist {dist} < {req}")
            m = re.match(r"s_nop (\d+)", s2)
            dist += int(m.group(1)) + 1 if m else 1

def mfmas(Z, H, t, F, Eop):
    L = []
    for s in range(4):
        c = "0" if s == 0 else vr(Z, 16)
        L.append(f"v_mfma_f32_32x32x16_bf16 {vr(Z,16)}, {vr(F+4*s,4)}, {vr(V_WB+16*t+4*s,4)}, {c}")
    L.append(f"v_mfma_f32_32x32x16_bf16 {vr(Z,16)}, {vr(Eop,4)}, {vr(V_WC[t],4)}, {vr(Z,16)}")
    for s in range(4):
        c = "0" if s == 0 else vr(H, 16)
        L.append(f"v_mfma_f32_32x32x16_bf16 {vr(H,16)}, {vr(F+4*s,4)}, {vr(V_WV+16*t+4*s,4)}, {c}")
    return L

def idx_reads(off):
    return [f"ds_read_u16 v{V_IDX+2*j}, v{V_AIDX} offset:{j*1024+off}" for j in range(4)]
def dma_m0(j): return f"s_add_u32 m0, s{S_GB}, {j*1024}"
def dma_ld(j, srd=S_XG): return f"buffer_load_dwordx4 {vr(V_IDX+2*j,2)}, {sr(srd,4)}, 0 idxen offen lds"
def dma_issue(srd):
    L = []
    for j in range(4): L += [dma_m0(j), "s_nop 0", dma_ld(j, srd)]
    return L
def frag_reads(F, Eop, off):
    return [f"ds_read_b128 {vr(F+4*s,4)}, v{V_RD+s}" for s in range(4)] + [f"ds_read_b64 {vr(Eop,2)}, v{V_ARE} offset:{off}"]
def gm_reads(ADR, off):
    return [f"ds_read_u16 v{ADR+p}, v{V_AGM} offset:{p*1024+off}" for p in range(2)]
def gm_adds(ADR):
    return [f"v_add_u32 v{ADR+p}, v{ADR+p}, v{V_COL}" for p in range(2)]
def xa_reads(ADR, t):
    return [f"ds_read_b32 v{V_WC[t]+2+p}, v{ADR+p} offset:{L_XA+4*t}" for p in range(2)]
def pv_reads(ADR):
    return [f"ds_read_b64 {vr(V_PV[p],2)}, v{ADR+p} offset:{L_AG}" for p in range(2)]
def res_writes(ADR):
    return [f"ds_write_b64 v{ADR+p}, {vr(V_RES[p],2)} offset:{L_AG}" for p in range(2)]

def unpk(op):
    m = re.match(r"v_pk_(\w+)_f32 (.*)", op)
    kind = m.group(1); ops = [x.strip() for x in m.group(2).split(",")]
    out = []
    for h in range(2):
        o = []
        for x in ops:
            mm = re.match(r"([vs])\[(\d+):(\d+)\]", x)
            o.append(f"{mm.group(1)}{int(mm.group(2))+h}")
        if kind == "add": out.append(f"v_add_f32 {o[0]}, 1.0, {o[1]}")
        elif kind == "fma" and o[0] == o[3]: out.append(f"v_fmac_f32 {o[0]}, {o[1]}, {o[2]}")
        else: out.append(f"v_{kind}_f32 " + ", ".join(o))
    return out

def chain_ops(Z, H):
    zp = lambda i: vr(Z + 2 * i, 2)
    hp = lambda i: vr(H + 2 * i, 2)
    Np, Dp = vr(V_N, 2), vr(V_D, 2)
    L = [(0, f"v_pk_add_f32 {Dp}, {zp(0)}, {sr(S_ONE,2)}")]
    for i in range(1, 8):
        src = hp(0) if i == 1 else Np
        L += [(i, f"v_pk_fma_f32 {Np}, {src}, {zp(i)}, {src}"),
              (i, f"v_pk_fma_f32 {Np}, {hp(i)}, {Dp}, {Np}"),
              (i, f"v_pk_fma_f32 {Dp}, {Dp}, {zp(i)}, {Dp}")]
    return L

def fin_ops(t):
    return [f"v_rcp_f32 v{V_R}, v{V_D}", f"v_rcp_f32 v{V_R+1}, v{V_D+1}",
            f"v_max3_f32 v{V_MAXD}, v{V_D}, v{V_D+1}, v{V_MAXD}",
            f"v_fma_f32 v{V_RES[0]+t}, v{V_N}, v{V_R}, v{V_PV[0]+t}",
            f"v_fma_f32 v{V_RES[1]+t}, v{V_N+1}, v{V_R+1}, v{V_PV[1]+t}"]

cost = lambda x: 8 if x.split()[0] in TRANS else 4

def phase_fast(Z, H, mf, finprev, extra, vextra):
    ex = lambda k: f"v_exp_f32 v{Z+k}, v{Z+k}"
    ch = chain_ops(Z, H)
    npl = OPT["npl"]
    plain = []
    for i, c in ch[:npl]:
        for x in unpk(c): plain.append((i, x))
    out = []
    ne = 0
    fin = list(finprev)
    for g in range(9):
        budget = 24 if g < 8 else 10**6
        items = []
        for x in vextra.get(g, []): items.append(x); budget -= 4
        last_exp = -10
        while budget > 0:
            if fin and cost(fin[0]) <= budget:
                x = fin.pop(0)
            elif fin:
                break
            else:
                can_plain = plain and ne >= 2 * plain[0][0] + 2 and not (items and items[-1] == ex(2 * plain[0][0] + 1)) \
                            and not (items and items[-1] == ex(2 * plain[0][0]))
                want_exp = ne < 16 and budget >= 8 and (not can_plain or ne < 2 * g + OPT["lead"])
                if want_exp: x = ex(ne); ne += 1
                elif can_plain: x = plain.pop(0)[1]
                else: break
            items.append(x); budget -= cost(x)
        out.append(mf[g])
        if OPT["prio"] and g in (3, 6): out.append(f"s_setprio {2 - g // 3}")
        xs = list(extra.get(g, []))
        groups = [[]]
        for x in xs:
            if x == "|": groups.append([])
            else: groups[-1].append(x)
        start = max(0, len(items) - len(groups))
        for k, x in enumerate(items):
            out.append(x)
            if k >= start and groups: out += groups.pop(0)
        for gp in groups: out += gp
    assert ne == 16 and not plain and not fin
    if OPT["prio"]: out.append("s_setprio 3")
    out += [c for _, c in ch[npl:]]
    if OPT["prio"]: out.append("s_setprio 2")
    return out

def phase_safe(Z, H, mf, t, extra, vextra):
    zp = lambda i: vr(Z + 2 * i, 2)
    v = [f"v_exp_f32 v{Z+k}, v{Z+k}" for k in range(16)]
    v += [f"v_add_f32 v{Z+k}, 1.0, v{Z+k}" for k in range(16)]
    v += [f"v_rcp_f32 v{Z+k}, v{Z+k}" for k in range(16)]
    v += [f"v_mul_f32 v{V_N+p}, v{H+p}, v{Z+p}" for p in range(2)]
    v += [f"v_fmac_f32 v{V_N+(k&1)}, v{H+k}, v{Z+k}" for k in range(2, 16)]
    out = []
    for g in range(9):
        out.append(mf[g])
        if g == 0: out += [f"v_add_f32 v{V_RES[p]+1-t}, v{V_N+p}, v{V_PV[p]+1-t}" for p in range(2)]
        out += vextra.get(g, [])
        out += v[5 * g: 5 * g + 5]
        for x in extra.get(g, []): out.append("s_nop 0" if x == "|" else x)
    out += v[45:]
    return out

def gen_loop(tag, safe=False):
    body = []
    T = S_TMP
    for u in range(2):
        cur, nxt = u, 1 - u
        G = OPT["gaps"]
        ex = {}
        def add(g, l): ex.setdefault(g, []).extend(l)
        add(G[0], res_writes(V_ADR[nxt]) + pv_reads(V_ADR[cur]) + gm_reads(V_ADR[nxt], 32 * (u + 1)))
        add(G[1], idx_reads(32 * (u + 2)))
        add(G[2], ["s_waitcnt vmcnt(0)"] + frag_reads(V_F[nxt], V_E[nxt], 64 * (u + 1)))
        add(G[3], xa_reads(V_ADR[nxt], 0))
        vx = {G[3]: gm_adds(V_ADR[nxt])}
        dma = [f"s_add_u32 s{T}, s{S_T}, 2", f"s_cmp_lt_u32 s{T}, s{S_N}", f"s_cselect_b32 s{S_XG+2}, {N}, 0", dma_m0(0), "|",
               f"@WAITREGS {vr(V_F[nxt],16)} {vr(V_IDX,8)}", dma_ld(0), dma_m0(1), "|", dma_ld(1), dma_m0(2), "|"]
        dma2 = [dma_ld(2), dma_m0(3), "|", dma_ld(3)]
        if G[4] < 9: add(G[4], dma); add(G[4] + 1, dma2)
        mf = mfmas(V_Z1, V_H1, 1, V_F[cur], V_E[cur])
        body += phase_safe(V_Z0, V_H0, mf, 0, ex, vx) if safe else phase_fast(V_Z0, V_H0, mf, fin_ops(1), ex, vx)
        ex = {}
        if G[4] >= 9: add(G[4] - 9, dma); add(G[4] - 8, dma2)
        add(G[5], xa_reads(V_ADR[nxt], 1))
        vx = {}
        if u == 1:
            vx[8] = [f"v_add_u32 v{V_ARE}, 128, v{V_ARE}", f"v_add_u32 v{V_AIDX}, 64, v{V_AIDX}", f"v_add_u32 v{V_AGM}, 64, v{V_AGM}"]
        add(5, [f"s_add_u32 s{S_T}, s{S_T}, 1"])
        mf = mfmas(V_Z0, V_H0, 0, V_F[nxt], V_E[nxt])
        body += phase_safe(V_Z1, V_H1, mf, 1, ex, vx) if safe else phase_fast(V_Z1, V_H1, mf, fin_ops(0), ex, vx)
        body += [f"s_cmp_lt_u32 s{S_T}, s{S_N}"]
        body += [f"s_cbranch_scc0 {tag}_EXIT0"] if u == 0 else [f"s_cbranch_scc1 {tag}_LOOP"]
    if OPT["nodma"]: body = [l for l in body if "buffer_load" not in l]
    if OPT["nolds"] == 1: body = [l for l in body if not l.strip().startswith("ds_")]
    body = add_lgkm_waits(body)
    check_hazards(body, tag)
    fin = [f"v_add_f32 v{V_RES[p]+1}, v{V_N+p}, v{V_PV[p]+1}" for p in range(2)] if safe else fin_ops(1)
    body += [f"v_mov_b32 v{V_ADR[0]}, v{V_ADR[1]}", f"v_mov_b32 v{V_ADR[0]+1}, v{V_ADR[1]+1}", f"{tag}_EXIT0:"]
    body += fin + res_writes(V_ADR[0])
    return body

def gen_k2():
    a = A()
    nst = [0]
    def stamp():
        if OPT["stamps"]:
            a(f"{MT()} s[{S_ST+2*nst[0]}:{S_ST+1+2*nst[0]}]\ns_waitcnt lgkmcnt(0)")
            nst[0] += 1
    T = S_TMP
    a(f"""
    s_load_dwordx2 s[{S_WS}:{S_WS+1}], s[0:1], 72
    s_load_dwordx2 s[{S_X}:{S_X+1}], s[0:1], 0
    s_load_dwordx2 s[{S_OUT}:{S_OUT+1}], s[0:1], 56
    s_cmp_ge_u32 s2, 256
    s_cbranch_scc1 K2_END
    v_lshrrev_b32 v1, 6, v0
    v_and_b32 v{V_LANE}, 63, v0
    v_readfirstlane_b32 s{S_W}, v1
    s_mov_b32 s{S_C}, 0xbfb8aa3b
    s_mov_b32 s{S_C+1}, 0xbfb8aa3b
    s_mov_b32 s{S_ONE}, 1.0
    s_mov_b32 s{S_ONE+1}, 1.0
    s_mov_b32 s{S_SAFE}, 0
    s_and_b32 s{T}, s2, 7
    s_lshl_b32 s{T}, s{T}, 5
    s_lshr_b32 s{S_B}, s2, 3
    s_or_b32 s{S_B}, s{S_B}, s{T}           ; bucket = (g&7)*32 + (g>>3)
    s_and_b32 s{S_P}, s{S_W}, 3
    s_lshr_b32 s{S_SEC}, s{S_W}, 2
    s_lshl_b32 s{S_GB}, s{S_W}, 12
    s_add_u32 s{S_GB}, s{S_GB}, {L_GB}
    s_mov_b32 s{S_WS+2}, {WS_REC + E*12}
    s_mov_b32 s{S_WS+3}, 0x00020000
    s_mov_b32 s{S_X+2}, {N}
    s_mov_b32 s{S_X+3}, 0x00020000
    s_mov_b32 s{S_XG+2}, {N}
    s_mov_b32 s{S_XG+3}, 0x00020000
    s_mov_b32 s{S_OUT+2}, {N}
    s_mov_b32 s{S_OUT+3}, 0x00020000
    s_waitcnt lgkmcnt(0)
    s_or_b32 s{S_X+1}, s{S_X+1}, 0x00800000
    s_or_b32 s{S_OUT+1}, s{S_OUT+1}, 0x00800000
    s_mov_b32 s{S_XG}, s{S_X}
    s_mov_b32 s{S_XG+1}, s{S_X+1}
    """)
    if OPT["stamps"]: a("s_memrealtime s[98:99]")
    stamp()
    a(f"""
K2_START:
    s_mov_b32 s{S_FIRST}, 1
    s_mov_b32 s{S_J0}, 0
    s_mov_b32 s{S_WIN}, 32
    v_mov_b32 v{V_MAXD}, 0
K2_ROUND:
    s_lshl_b32 s{T}, s{S_B}, 10
    s_lshl_b32 s{T+1}, s{S_W}, 7
    s_add_u32 s{T}, s{T}, s{T+1}
    s_add_u32 s{T}, s{T}, {WS_TAB}
    v_lshrrev_b32 v1, 4, v{V_LANE}
    v_lshlrev_b32 v1, 5, v1
    buffer_load_dwordx4 {vr(V_TAB,4)}, v1, {sr(S_WS,4)}, s{T} offen
    buffer_load_dwordx4 {vr(V_TAB+4,4)}, v1, {sr(S_WS,4)}, s{T} offen offset:16
    v_lshlrev_b32 v2, 4, v{V_LANE}          ; lane*16
    s_lshl_b32 s{T}, s{S_W}, 12
    """)
    for j in range(4):
        a(f"""
        s_add_u32 m0, s{S_GB}, {j*1024}
        s_add_u32 s{T+1}, s{T}, {j*1024}
        buffer_load_dwordx4 v2, {sr(S_WS,4)}, s{T+1} offen lds
        """)
    a(f"""
    v_lshrrev_b32 v3, 3, v{V_LANE}
    v_bfe_u32 v4, v{V_LANE}, 4, 1
    v_and_b32 v5, 7, v{V_LANE}
    v_xor_b32 v{V_T0}, v5, v4
    s_lshl_b32 s{T}, s{S_W}, 4
    v_add_u32 v3, s{T}, v3
    v_lshlrev_b32 v3, 8, v3
    v_add_u32 v6, s{S_B}, v3
    v_add_u32 v4, 2048, v6                  ; i=1
    s_and_b32 s{T+1}, s{S_W}, 1             ; j = 2*(w&1) + i
    s_lshl_b32 s{T+2}, s{T+1}, 2
    v_xor_b32 v7, s{T+2}, v{V_T0}
    v_xor_b32 v5, 2, v7
    v_lshlrev_b32 v7, 4, v7
    v_lshlrev_b32 v5, 4, v5
    s_lshr_b32 s{T+3}, s{S_W}, 1            ; tile
    s_and_b32 s{T+4}, s{T+3}, 1
    s_lshl_b32 s{T+4}, s{T+4}, 12
    s_cmp_ge_u32 s{T+3}, 2
    s_cselect_b32 s{T+5}, {L_AG-L_XA}, 0
    s_add_u32 s{T+4}, s{T+4}, s{T+5}
    s_add_u32 s{T+8}, s{T+4}, {L_XA+SPILL0}
    s_lshl_b32 s{T+1}, s{T+1}, 11
    s_add_u32 m0, s{T+8}, s{T+1}
    v_lshlrev_b32 v3, 3, v{V_LANE}
    buffer_load_dwordx4 v[6:7], {sr(S_X,4)}, 0 idxen offen lds
    s_add_u32 m0, m0, 1024
    s_mov_b32 s{T}, 32768
    buffer_load_dwordx4 v[4:5], {sr(S_X,4)}, 0 idxen offen lds
    buffer_load_dwordx2 {vr(V_WC[0],2)}, v3, {sr(S_WS,4)}, s{T} offen
    buffer_load_dwordx2 {vr(V_WC[1],2)}, v3, {sr(S_WS,4)}, s{T} offen offset:512
    ; (c) prefill
    v_lshlrev_b32 v3, 4, v0                 ; tid*16
    v_mov_b32 v4, {NULLW}
    v_mov_b32 v5, v4
    v_mov_b32 v6, v4
    v_mov_b32 v7, v4
    v_add_u32 v1, {L_RW}, v3
    v_mov_b32 v16, 0
    v_mov_b32 v17, 0
    v_mov_b32 v18, 0
    v_mov_b32 v19, 0
    ds_write_b128 v1, v[4:7]
    ds_write_b128 v1, v[4:7] offset:8192
    ds_write_b128 v1, v[16:19] offset:16384
    ds_write_b128 v1, v[16:19] offset:24576
    ds_write_b128 v1, v[16:19] offset:32768
    ds_write_b128 v1, v[16:19] offset:40960
    v_lshlrev_b32 v3, 3, v0
    v_add_u32 v1, {L_CNT}, v3
    v_mov_b32 v4, 0x7fff
    s_movk_i32 s{T+2}, {128+136}
    v_cmp_lt_u32 vcc, 127, v0
    v_cmp_gt_u32 s[{T}:{T+1}], s{T+2}, v0
    v_lshlrev_b32 v2, 2, v{V_LANE}
    v_cndmask_b32 v20, v16, v4, vcc
    v_mov_b32 v21, 0
    ds_write_b32 v2, v16 offset:{L_XA+DUMMY}
    v_add_u32 v2, {L_AG+DUMMY}, v2
    ds_write_b32 v2, v16
    s_mov_b64 exec, s[{T}:{T+1}]
    ds_write_b64 v1, v[20:21]
    s_mov_b64 exec, -1
    v_mov_b32 v1, {L_FLG}
    ds_write_b32 v1, v16
    s_cmp_eq_u32 s{S_FIRST}, 0
    s_cbranch_scc1 K2_NOFLG
    ds_write_b32 v1, v16 offset:4
K2_NOFLG:
    ; loop constants.  reader addresses: r(m)*128 + ((h^m3) | ((s ^ (m0|m2<<1))<<1))*16
    v_and_b32 v1, 1, v{V_LANE}              ; m0
    v_bfe_u32 v2, v{V_LANE}, 1, 1           ; m1
    v_bfe_u32 v3, v{V_LANE}, 2, 1           ; m2
    v_bfe_u32 v4, v{V_LANE}, 3, 1           ; m3
    v_bfe_u32 v5, v{V_LANE}, 4, 1           ; m4
    v_lshrrev_b32 v34, 5, v{V_LANE}         ; h
    v_lshl_or_b32 v35, v3, 1, v1            ; j(m) = 2*m2 + m0
    v_lshl_or_b32 v6, v4, 1, v2
    v_lshl_or_b32 v6, v5, 2, v6             ; i(m) = m1 + 2*m3 + 4*m4
    v_lshl_or_b32 v{V_T1}, v35, 3, v6       ; r(m)
    v_lshlrev_b32 v{V_T1}, 7, v{V_T1}
    v_xor_b32 v4, v4, v34                   ; h^m3
    v_lshl_or_b32 v4, v35, 1, v4
    v_lshl_or_b32 v{V_T1}, v4, 4, v{V_T1}   ; s=0 address, tile relative
    v_lshl_or_b32 v{V_ARE}, v35, 8, v6
    v_lshlrev_b32 v{V_ARE}, 3, v{V_ARE}
    v_lshrrev_b32 v{V_AIDX}, 3, v{V_LANE}
    v_lshlrev_b32 v{V_AIDX}, 2, v{V_AIDX}
    v_lshlrev_b32 v{V_AGM}, 11, v34
    v_and_b32 v{V_COL}, 31, v{V_LANE}
    v_lshlrev_b32 v{V_COL}, 3, v{V_COL}
    """)
    for s in range(4):
        a(f"v_xor_b32 v{V_RD+s}, {s<<5}, v{V_T1}")
    a(f"""
    ; (d) record addresses
    v_and_b32 v1, 15, v{V_LANE}
    v_cmp_gt_u32 vcc, s{S_WIN}, v1
    v_add_u32 v1, s{S_J0}, v1               ; j
    v_mul_u32_u24 v2, 12, v1
    v_add_u32 v2, {WS_REC}, v2
    v_mov_b32 v3, 0x7fffffff
    v_cndmask_b32 v1, v3, v1, vcc
    s_cmp_eq_u32 s{S_WIN}, 32
    s_cselect_b32 s{T}, 16, 0x40000000
    v_add_u32 v3, s{T}, v1
    s_and_b32 s{T+4}, s{S_P}, 1
    s_lshl_b32 s{T+4}, s{T+4}, 12
    s_cmp_ge_u32 s{S_P}, 2
    s_cselect_b32 s{T+5}, {L_AG-L_XA}, 0
    s_add_u32 s{T+4}, s{T+4}, s{T+5}
    s_add_u32 s{T+8}, s{T+4}, {L_XA+SPILL0}
    v_lshlrev_b32 v32, 4, v{V_LANE}
    v_add_u32 v32, {L_GB}, v32
    s_lshl_b32 s{T+2}, s{S_SEC}, 13
    v_add_u32 v33, s{T+2}, v32
    v_add_u32 v4, s{T+8}, v{V_RD}
    v_add_u32 v5, s{T+8}, v{V_RD+1}
    v_add_u32 v6, s{T+8}, v{V_RD+2}
    v_add_u32 v7, s{T+8}, v{V_RD+3}
    s_waitcnt vmcnt(0) lgkmcnt(0)
    s_barrier
    """)
    stamp()
    for s_ in range(4):
        a(f"ds_read_b128 {vr(V_XF+4*s_,4)}, v{4+s_}")
    for f in range(8):
        a(f"ds_read_b128 {vr(V_WB+4*f,4)}, v33 offset:{16384+f*1024}")
    for p in range(8):
        a(f"""
        v_and_b32 v{16+p}, 0xfff, v{V_TAB+p}
        v_lshrrev_b32 v{24+p}, 12, v{V_TAB+p}
        v_cmp_lt_u32 s[{S_MSK+16+2*p}:{S_MSK+16+2*p+1}], v3, v{16+p}
        v_mad_u32_u24 v{24+p}, v{24+p}, 12, v2
        """)
    for p in range(8):
        a(f"""
        s_mov_b64 exec, s[{S_MSK+16+2*p}:{S_MSK+16+2*p+1}]
        s_cbranch_execz K2_LB{p}
        buffer_load_dwordx3 {vr(V_REC+32+4*p,3)}, v{24+p}, {sr(S_WS,4)}, 0 offen offset:192
K2_LB{p}:
        """)
    a("s_mov_b64 exec, -1")
    for p in range(8):
        a(f"v_cmp_lt_u32 s[{S_MSK+2*p}:{S_MSK+2*p+1}], v1, v{16+p}")
    def recload(p):
        a(f"""
        s_mov_b64 exec, s[{S_MSK+2*p}:{S_MSK+2*p+1}]
        buffer_load_dwordx3 {vr(V_REC+4*p,3)}, v{24+p}, {sr(S_WS,4)}, 0 offen
        s_mov_b64 exec, -1
        """)
    recload(0); recload(1)
    a("s_waitcnt lgkmcnt(0)\ns_nop 1")
    for t in range(2):
        for s_ in range(4):
            c = "0" if s_ == 0 else vr(V_PACC + 16 * t, 16)
            a(f"v_mfma_f32_32x32x16_bf16 {vr(V_PACC+16*t,16)}, {vr(V_XF+4*s_,4)}, {vr(V_WB+16*t+4*s_,4)}, {c}")
    recload(2); recload(3)
    for f in range(8):
        a(f"ds_read_b128 {vr(V_WV+4*f,4)}, v32 offset:{8192+f*1024}")
    recload(4); recload(5)
    for f in range(8):
        a(f"ds_read_b128 {vr(V_WB+4*f,4)}, v32 offset:{f*1024}")
    recload(6); recload(7)
    a(f"""
    v_max3_u32 v4, v16, v17, v18
    v_max3_u32 v4, v19, v20, v4
    v_max3_u32 v4, v21, v22, v4
    v_max_u32 v4, v23, v4
    s_add_u32 s{T}, s{S_J0}, s{S_WIN}
    v_cmp_lt_u32 vcc, s{T}, v4
    v_mov_b32 v5, {L_FLG}
    v_mov_b32 v6, 1
    s_lshl_b32 s{T+2}, s{S_P}, 13           ; tile*32*256
    s_mul_i32 s{T+5}, s{S_SEC}, {L_AG-L_XA}
    s_add_u32 s{T+2}, s{T+2}, s{T+5}
    v_lshlrev_b32 v2, 12, v34               ; h*16*256
    v_add3_u32 v2, v2, v{V_COL}, s{T+2}
    s_mov_b64 exec, vcc
    ds_write_b32 v5, v6
    s_mov_b64 exec, -1
    s_cmp_eq_u32 s{S_FIRST}, 0
    s_cbranch_scc1 K2_NOINIT
    s_cmp_eq_u32 s{S_SEC}, 0
    s_cbranch_scc0 K2_NOSPLIT
    """)
    for i in range(0, 32, 2):
        r = V_PACC + i
        a(f"""
        v_pk_mul_f32 {vr(r,2)}, {vr(r,2)}, {sr(S_C,2)}
        v_cvt_pk_bf16_f32 v4, v{r}, v{r+1}
        v_lshlrev_b32 v6, 16, v4
        v_and_b32 v7, 0xffff0000, v4
        v_pk_add_f32 {vr(r,2)}, {vr(r,2)}, v[6:7] neg_lo:[0,1] neg_hi:[0,1]
        v_cvt_pk_bf16_f32 v{r}, v6, v{r}
        v_cvt_pk_bf16_f32 v{r+1}, v7, v{r+1}
        """)
    a(f"""
K2_NOSPLIT:
    s_cmp_eq_u32 s{S_P}, 3
    s_cselect_b32 exec_hi, 0, -1
    """)
    for rr in (0, 2):
        row = 8 * (rr & 1) + (rr >> 1)
        a(f"ds_write2_b32 v2, v{V_PACC+rr}, v{V_PACC+16+rr} offset0:{row*64} offset1:{row*64+1}")
    a("s_mov_b32 exec_hi, -1\ns_cbranch_scc1 K2_NOINIT")
    a("v_add_u32 v3, 1024, v2\nv_add_u32 v4, 2048, v2\nv_add_u32 v5, 3072, v2")
    for rr in range(16):
        if rr in (0, 2): continue
        row = 8 * (rr & 1) + (rr >> 1)
        a(f"ds_write2_b32 v{2+row//4}, v{V_PACC+rr}, v{V_PACC+16+rr} offset0:{(row%4)*64} offset1:{(row%4)*64+1}")
    a(f"""
K2_NOINIT:
    s_mov_b32 s{S_FIRST}, 0
    v_mov_b32 v1, 4096
    """)
    stamp()
    def rank(k):
        r = V_REC + 4 * k
        a(f"s_mov_b64 exec, s[{S_MSK+2*k}:{S_MSK+2*k+1}]")
        if k >= 8: a(f"s_cbranch_execz K2_RK{k}")
        a(f"""
        v_lshrrev_b32 v{16+k}, 22, v{r+2}
        v_add_u32 v{16+k}, {L_CNT}, v{16+k}
        ds_add_rtn_u32 v{r+3}, v{16+k}, v1
        """)
        if k >= 8: a(f"K2_RK{k}:")
    a("s_waitcnt vmcnt(8)")
    for k in range(8, 16): rank(k)
    for k in range(8):
        a(f"s_waitcnt vmcnt({7-k})")
        rank(k)
    a("s_mov_b64 exec, -1")
    for s_ in range(4):
        a(f"v_add_u32 v{V_RD+s_}, s{S_GB}, v{V_RD+s_}")
    for j in range(4):
        a(f"v_xor_b32 v4, {2*j}, v{V_T0}\nv_lshlrev_b32 v{V_IDX+2*j+1}, 4, v4")
    a(f"""
    v_lshlrev_b32 v4, 1, v34
    v_mov_b32 v5, 0x3f803f80
    v_cmp_eq_u32 vcc, v35, v4
    v_add_u32 v4, 1, v4
    v_cmp_eq_u32 s[{T}:{T+1}], v35, v4
    s_nop 0
    v_cndmask_b32 v{V_E[0]+2}, 0, v5, vcc
    v_cndmask_b32 v{V_E[1]+2}, 0, v5, vcc
    v_cndmask_b32 v{V_E[0]+3}, 0, v5, s[{T}:{T+1}]
    v_cndmask_b32 v{V_E[1]+3}, 0, v5, s[{T}:{T+1}]
    """)
    a(f"""
    s_mov_b64 exec, -1
    v_lshlrev_b32 v1, 3, v{V_LANE}
    v_add_u32 v1, {L_CNT}, v1
    v_lshrrev_b32 v8, 4, v{V_LANE}
    v_and_b32 v9, 15, v{V_LANE}
    s_lshl_b32 s{T+4}, s{S_P}, 3
    s_add_u32 s{T+4}, s{T+4}, s{S_SEC}
    v_lshl_add_u32 v10, v8, 1, s{T+4}       ; o
    v_lshlrev_b32 v11, 8, v10
    v_add_u32 v11, {SPILL0}, v11
    v_lshl_add_u32 v12, v9, 4, v11
    v_mov_b32 v32, 0
    v_mov_b32 v33, 0
    v_mov_b32 v34, 0
    v_mov_b32 v35, 0
    s_waitcnt lgkmcnt(0)
    s_barrier
    """)
    stamp()
    a(f"""
    ds_read_b64 v[2:3], v1
    ds_write_b128 v12, v[32:35] offset:{L_AG}
    s_waitcnt lgkmcnt(1)
    v_add_u32 v2, {7<<12}, v2
    v_add_u32 v3, {7<<12}, v3
    v_lshrrev_b32 v2, 15, v2
    v_lshrrev_b32 v3, 15, v3
    v_add_u32 v4, v2, v3
    v_mov_b32 v5, v4
    """)
    scan64(a, 5)
    a(f"""
    v_sub_u32 v6, v5, v4
    v_readlane_b32 s{T}, v5, 63             ; G
    v_add_u32 v7, v6, v2
    v_lshlrev_b32 v6, 15, v6
    v_lshlrev_b32 v7, 15, v7
    ds_write_b64 v1, v[6:7] offset:512
    s_cmp_gt_u32 s{T}, 512
    s_cbranch_scc1 K2_CAP
    """)
    for k in range(16):
        a(f"s_mov_b64 exec, s[{S_MSK+2*k}:{S_MSK+2*k+1}]")
        if k >= 8: a(f"s_cbranch_execz K2_NR{k}")
        a(f"ds_read_b32 v{16+k}, v{16+k} offset:512")
        if k >= 8: a(f"K2_NR{k}:")
    a(f"""
    s_mov_b64 exec, -1
    s_add_u32 s{T}, s{T}, 15
    s_lshr_b32 s{T}, s{T}, 4                ; Lp
    s_max_u32 s{T}, s{T}, 1
    v_cvt_f32_u32 v2, s{T}
    v_rcp_f32 v2, v2
    s_add_u32 s{T+1}, s{T}, 1
    s_lshr_b32 s{T+1}, s{T+1}, 1            ; n1
    s_sub_u32 s{T+2}, s{T}, s{T+1}          ; n2
    v_mul_f32 v2, 0x48000000, v2
    v_cvt_u32_f32 v2, v2
    v_add_u32 v2, 1, v2
    s_cmp_eq_u32 s{S_SEC}, 0
    s_cselect_b32 s{S_N}, s{T+1}, s{T+2}
    s_cselect_b32 s{S_KK0}, 0, s{T+1}
    v_readfirstlane_b32 s{S_M}, v2
    s_lshl_b32 s{T+3}, s{T}, 6
    s_sub_u32 s{S_DD}, 2048, s{T+3}         ; (256 - 8 Lp)*8
    s_lshl_b32 s{T}, s{S_P}, 10             ; 4P*256 slots
    s_lshl_b32 s{T+1}, s{S_KK0}, 3
    s_add_u32 s{T}, s{T}, s{T+1}
    s_lshl_b32 s{T+1}, s{T}, 3
    s_add_u32 s{T+1}, s{T+1}, {L_RE}
    s_lshl_b32 s{T+2}, s{T}, 2
    s_add_u32 s{T+2}, s{T+2}, {L_RW}
    s_add_u32 s{T+3}, s{T+2}, 2
    v_add_u32 v{V_ARE}, s{T+1}, v{V_ARE}
    v_add_u32 v{V_AIDX}, s{T+2}, v{V_AIDX}
    v_add_u32 v{V_AGM}, s{T+3}, v{V_AGM}
    v_lshlrev_b32 v13, 10, v8
    v_add_u32 v13, s{T+3}, v13
    v_lshl_add_u32 v14, v9, 5, v13          ; group k
    s_mov_b32 s{T+4}, {L_RE}
    s_waitcnt lgkmcnt(0)
    """)
    for k in range(16):
        r = V_REC + 4 * k
        a(f"s_mov_b64 exec, s[{S_MSK+2*k}:{S_MSK+2*k+1}]")
        if k >= 8: a(f"s_cbranch_execz K2_SC{k}")
        a(f"""
        v_add_u32 v{r+3}, v{16+k}, v{r+3}
        v_mul_hi_u32_u24 v{16+k}, s{S_M}, v{r+3}
        v_lshrrev_b32 v{r+3}, 9, v{r+3}
        v_mad_u32_u24 v{r+3}, v{16+k}, s{S_DD}, v{r+3}
        v_add_u32 v{r+3}, {L_RE}, v{r+3}
        v_lshrrev_b32 v{16+k}, 1, v{r+3}
        ds_write_b64 v{r+3}, {vr(r,2)}
        ds_write_b32 v{16+k}, v{r+2} offset:{L_RW - L_RE//2}
        """)
        if k >= 8: a(f"K2_SC{k}:")
    a(f"""
    s_mov_b64 exec, -1
    v_add_u32 v{V_ADR[1]}, {DUMMY}, v{V_COL}
    v_add_u32 v{V_ADR[1]+1}, {DUMMY}, v{V_COL}
    v_mov_b32 v{V_N}, 0
    v_mov_b32 v{V_N+1}, 0
    v_mov_b32 v{V_D}, 1.0
    v_mov_b32 v{V_D+1}, 1.0
    v_mov_b32 v{V_PV[0]+1}, 0
    v_mov_b32 v{V_PV[1]+1}, 0
    v_mov_b32 v{V_RES[0]}, 0
    v_mov_b32 v{V_RES[1]}, 0
    s_mov_b32 s{S_T}, 0
    s_cmp_lt_u32 s{S_N}, 2
    s_cselect_b32 s{S_XG+2}, 0, {N}
    s_waitcnt lgkmcnt(0)
    s_barrier
    """)
    stamp()
    a(f"""
    s_cmp_eq_u32 s{S_N}, 0
    s_cbranch_scc1 K2_DONE
    """)
    for l in idx_reads(0): a(l)
    a(f"""
    ds_read_u16 v15, v13
    ds_read_u16 v16, v14
    s_waitcnt lgkmcnt(2)
    """)
    for l in dma_issue(S_X): a(l)
    for l in idx_reads(32): a(l)
    a(f"""
    s_waitcnt lgkmcnt(4)
    v_lshl_add_u32 v17, v9, 4, v15
    ds_read_b128 v[32:35], v17 offset:{L_XA}
    v_cmp_eq_u32 vcc, v15, v16
    v_cmp_gt_u32 s[{T}:{T+1}], s{S_N}, v9
    s_and_b64 exec, vcc, s[{T}:{T+1}]
    ds_write_b16 v14, v11
    v_cmp_eq_u32 vcc, 0, v9
    v_lshrrev_b32 v18, 5, v15
    v_add_u32 v18, {L_SP}, v18
    v_add_u32 v19, 1, v10
    s_mov_b64 exec, vcc
    ds_min_u32 v18, v10
    ds_max_u32 v18, v19 offset:4
    s_mov_b64 exec, -1
    """)
    for l in gm_reads(V_ADR[0], 0): a(l)
    a(f"""
    s_waitcnt lgkmcnt(5)
    ds_write_b128 v12, v[32:35] offset:{L_XA}
    s_waitcnt lgkmcnt(1)
    """)
    for l in gm_adds(V_ADR[0]): a(l)
    for l in xa_reads(V_ADR[0], 0) + xa_reads(V_ADR[0], 1): a(l)
    a("s_waitcnt vmcnt(0)")
    for l in frag_reads(V_F[0], V_E[0], 0): a(l)
    mf = mfmas(V_Z0, V_H0, 0, V_F[0], V_E[0])
    for k in range(4): a(f"s_waitcnt lgkmcnt({4-k})\n{mf[k]}")
    for l in dma_issue(S_XG): a(l)
    a("s_waitcnt lgkmcnt(0)")
    for l in mf[4:]: a(l)
    stamp()
    a(f"""
    s_cmp_lg_u32 s{S_SAFE}, 0
    s_cbranch_scc1 K2S_PRE
    s_nop 7
    .p2align 6
K2F_LOOP:
    """)
    for l in gen_loop("K2F"): a(l)
    a(f"""
K2_DONE:
    s_setprio 0
    """)
    if OPT["stamps"]: a("s_waitcnt vmcnt(0) lgkmcnt(0)")
    stamp()
    a(f"""
    v_mov_b32 v1, 0x7b800000                ; 2^120
    v_cmp_lt_f32 vcc, v1, v{V_MAXD}
    v_lshrrev_b32 v2, 3, v0
    v_and_b32 v3, 7, v0
    v_mov_b32 v1, {L_FLG}
    v_mov_b32 v15, 1
    v_lshlrev_b32 v4, 5, v3                 ; f8*32
    v_lshl_add_u32 v5, v2, 8, v4
    v_add_u32 v5, {L_AG}, v5                ; AG address pass 0
    v_lshlrev_b32 v6, 3, v2
    v_add_u32 v6, {L_SP}, v6
    v_add_u32 v4, {L_AG+SPILL0}, v4
    v_cmp_gt_u32 s[{T+4}:{T+5}], 34, v2
    s_mov_b64 exec, vcc
    ds_write_b32 v1, v15 offset:4
    s_mov_b64 exec, -1
    v_lshlrev_b32 v12, 8, v2
    v_add_u32 v12, s{S_B}, v12              ; node
    v_lshlrev_b32 v13, 4, v3
    v_mov_b32 v64, 0
    v_mov_b32 v65, 0
    v_mov_b32 v66, 0
    v_mov_b32 v67, 0
    s_waitcnt vmcnt(0) lgkmcnt(0)
    s_barrier
    """)
    stamp()
    a(f"""
    ds_read_b64 v[8:9], v6
    ds_read_b64 v[10:11], v6 offset:512
    ds_read_b32 v7, v1
    ds_read_b128 v[16:19], v5
    ds_read_b128 v[20:23], v5 offset:16
    ds_read_b128 v[24:27], v5 offset:16384
    ds_read_b128 v[28:31], v5 offset:16400
    s_waitcnt lgkmcnt(4)
    v_readfirstlane_b32 s{T+6}, v7
K2_MRG:
    v_cmp_lt_u32 s[{T}:{T+1}], v8, v9
    v_cmp_lt_u32 s[{T+2}:{T+3}], v10, v11
    v_lshl_add_u32 v14, v8, 8, v4
    v_lshl_add_u32 v7, v10, 8, v4
    s_or_b64 vcc, s[{T}:{T+1}], s[{T+2}:{T+3}]
    s_cbranch_scc0 K2_MRGD
    s_mov_b64 exec, s[{T}:{T+1}]
    ds_read_b128 v[68:71], v14
    ds_read_b128 v[72:75], v14 offset:16
    v_add_u32 v8, 1, v8
    s_mov_b64 exec, s[{T+2}:{T+3}]
    ds_read_b128 v[76:79], v7
    ds_read_b128 v[80:83], v7 offset:16
    v_add_u32 v10, 1, v10
    s_mov_b64 exec, s[{T}:{T+1}]
    s_waitcnt lgkmcnt(2)
    """)
    for i in range(4): a(f"v_pk_add_f32 {vr(16+2*i,2)}, {vr(16+2*i,2)}, {vr(68+2*i,2)}")
    a(f"""
    s_mov_b64 exec, s[{T+2}:{T+3}]
    s_waitcnt lgkmcnt(0)
    """)
    for i in range(4): a(f"v_pk_add_f32 {vr(24+2*i,2)}, {vr(24+2*i,2)}, {vr(76+2*i,2)}")
    a(f"""
    s_mov_b64 exec, -1
    s_branch K2_MRG
K2_MRGD:
    s_cmp_lg_u32 s{T+6}, 0
    s_waitcnt lgkmcnt(0)
    s_cbranch_scc1 K2_NEXT
    """)
    def silu(base, tmp):
        for i in range(4): a(f"v_pk_mul_f32 {vr(tmp+2*i,2)}, {vr(base+2*i,2)}, {sr(S_C,2)}")
        for i in range(8): a(f"v_exp_f32 v{tmp+i}, v{tmp+i}")
        for i in range(4): a(f"v_pk_fma_f32 v[64:65], {vr(base+2*i,2)}, v[66:67], v[64:65]")
        for i in range(4): a(f"v_pk_add_f32 {vr(tmp+2*i,2)}, {vr(tmp+2*i,2)}, {sr(S_ONE,2)}")
        for i in range(8): a(f"v_rcp_f32 v{tmp+i}, v{tmp+i}")
        a("s_nop 0")
        for i in range(4): a(f"v_pk_mul_f32 {vr(tmp+2*i,2)}, {vr(tmp+2*i,2)}, {vr(base+2*i,2)}")
        for i in range(4): a(f"v_cvt_pk_bf16_f32 v{base+i}, v{tmp+2*i}, v{tmp+2*i+1}")
    silu(16, 68)
    a(f"""
    buffer_store_dwordx4 v[16:19], v[12:13], {sr(S_OUT,4)}, 0 idxen offen
    s_mov_b64 exec, s[{T+4}:{T+5}]
    s_cbranch_execz K2_OUT2
    v_add_u32 v10, {64*256}, v12
    v_mov_b32 v11, v13
    """)
    silu(24, 76)
    a(f"""
    buffer_store_dwordx4 v[24:27], v[10:11], {sr(S_OUT,4)}, 0 idxen offen
K2_OUT2:
    s_mov_b64 exec, -1
    v_cmp_u_f32 vcc, v64, v65
    s_cmp_lg_u32 s{S_SAFE}, 0
    s_cbranch_scc1 K2_FIN
    s_mov_b64 exec, vcc
    ds_write_b32 v1, v15 offset:4
    s_mov_b64 exec, -1
    s_waitcnt lgkmcnt(0)
    s_barrier
    ds_read_b32 v7, v1 offset:4
    s_waitcnt lgkmcnt(0)
    v_readfirstlane_b32 s{T}, v7
    s_cmp_lg_u32 s{T}, 0
    s_cbranch_scc1 K2_REDO
K2_FIN:
    """)
    if OPT["stamps"]:
        a("s_waitcnt vmcnt(0)")
        a("s_memrealtime s[100:101]")
        a(f"{MT()} s[{S_MSK}:{S_MSK+1}]")
        a(f"""
        s_load_dwordx2 s[2:3], s[0:1], 72
        s_lshl_b32 s{T}, s{S_B}, 3
        s_add_u32 s{T}, s{T}, s{S_W}
        s_lshl_b32 s{T}, s{T}, 6
        s_add_u32 s{T}, s{T}, {WS_DBG + 0x10000}
        v_mov_b32 v1, s{T}
        s_waitcnt lgkmcnt(0)
        """)
        assert nst[0] <= 9
        for i in range(nst[0]):
            a(f"v_mov_b32 v2, s{S_ST+2*i}\nglobal_store_dword v1, v2, s[2:3] offset:{4*i}")
        a(f"v_mov_b32 v2, s{S_MSK}\nglobal_store_dword v1, v2, s[2:3] offset:{4*nst[0]}")
        a(f"v_mov_b32 v2, s{S_N}\nglobal_store_dword v1, v2, s[2:3] offset:60")
        a("v_mov_b32 v2, s98\nglobal_store_dword v1, v2, s[2:3] offset:48\nv_mov_b32 v2, s100\nglobal_store_dword v1, v2, s[2:3] offset:52")
    a(f"""
K2_END:
    s_endpgm
K2_CAP:
    s_mov_b32 s{S_WIN}, 8
    s_waitcnt vmcnt(0) lgkmcnt(0)
    s_barrier
    s_branch K2_ROUND
K2_NEXT:
    ds_write_b128 v5, v[16:19]
    ds_write_b128 v5, v[20:23] offset:16
    s_mov_b64 exec, s[{T+4}:{T+5}]
    ds_write_b128 v5, v[24:27] offset:16384
    ds_write_b128 v5, v[28:31] offset:16400
    s_mov_b64 exec, -1
    s_add_u32 s{S_J0}, s{S_J0}, s{S_WIN}
    s_waitcnt lgkmcnt(0)
    s_barrier
    s_branch K2_ROUND
K2_REDO:
    s_mov_b32 s{S_SAFE}, 1
    s_waitcnt vmcnt(0)
    s_barrier
    s_branch K2_START
K2S_PRE:
    s_nop 7
K2S_LOOP:
    """)
    for l in gen_loop("K2S", safe=True): a(l)
    a("s_branch K2_DONE")
    return a.text()

def main():
    HEADER = open("standalone__edge_featured_mpnn_egc__graph.s.ref").read().split("; Override launch")[0]
    out = HEADER
    out += f"; @launch kernel=egc_bin_kernel grid=(256,1,1) block=({K1_BLOCK},1,1) lds={K1_LDS}\n"
    out += f"; @launch kernel=egc_main_kernel grid=(256,1,1) block=(512,1,1) lds={K2_LDS}\n"
    out += '.amdgcn_target "amdgcn-amd-amdhsa--gfx950"\n'
    out += khead("egc_bin_kernel") + gen_k1()
    out += khead("egc_main_kernel") + gen_k2()
    out += kd("egc_bin_kernel", 60, 80)
    out += kd("egc_main_kernel", 256, 102)
    open(sys.argv[1], "w").write(out)

if __name__ == '__main__':
    main()
```

```python
import sys, re

N = 25000
E = 800000
NCH = 250
CH = 3200
WS_WF = 0
WS_TAB = 0x10000
WS_REC = 0x100000
WS_DBG = 0x4000000

OPT = dict(stamps=0, prio=1, npl=8, lead=2, gaps=[1,2,3,5,9,3], nodma=0, nolds=0, pfm=384, pfr=1, pfx=1, k1nt=1, k1x=1, cpf=1)
if __name__ == "__main__":
    for a in sys.argv[2:]:
        k, v = a.split("=")
        OPT[k] = [int(x) for x in v.split(',')] if ',' in v else int(v)

def MT(): return 's_memrealtime' if OPT['stamps'] == 2 else 's_memtime'

class A:
    def __init__(self):
        self.l = []
    def __call__(self, s):
        for x in s.strip("\n").split("\n"):
            self.l.append(x if x.strip().endswith(":") and not x.startswith(" ") else "    " + x.strip())
    def label(self, s):
        self.l.append(s + ":")
    def text(self):
        return "\n".join(self.l) + "\n"

def vr(a, n=1):
    return f"v{a}" if n == 1 else f"v[{a}:{a+n-1}]"
def sr(a, n=1):
    return f"s{a}" if n == 1 else f"s[{a}:{a+n-1}]"

def scan64(a, v):
    for sh in (1, 2, 4, 8):
        a(f"s_nop 1\nv_add_u32_dpp v{v}, v{v}, v{v} row_shr:{sh} row_mask:0xf bank_mask:0xf")
    a(f"s_nop 1\nv_add_u32_dpp v{v}, v{v}, v{v} row_bcast:15 row_mask:0xa bank_mask:0xf")
    a(f"s_nop 1\nv_add_u32_dpp v{v}, v{v}, v{v} row_bcast:31 row_mask:0xc bank_mask:0xf")

def kd(name, vgpr, sgpr):
    acc = (vgpr + 3) // 4 * 4
    return f""".section .rodata,"a"
.p2align 6
.amdhsa_kernel {name}
  .amdhsa_next_free_vgpr {vgpr}
  .amdhsa_next_free_sgpr {sgpr}
  .amdhsa_accum_offset {acc}
  .amdhsa_group_segment_fixed_size 0
  .amdhsa_kernarg_size 80
  .amdhsa_user_sgpr_count 2
  .amdhsa_user_sgpr_kernarg_segment_ptr 1
  .amdhsa_system_sgpr_workgroup_id_x 1
.end_amdhsa_kernel
"""

def khead(name):
    return f""".text
.globl {name}
.p2align 8
.type {name},@function
{name}:
"""

K1_HIST = 0
K1_OFFS = 1024
K1_STAGE = 4096
K1_LDS = K1_STAGE + CH * 12
K1_BLOCK = 832

def gen_k1():
    a = A()
    nst = [0]
    def stamp():
        if OPT["stamps"]:
            a(f"{MT()} s[{60+2*nst[0]}:{61+2*nst[0]}]\ns_waitcnt lgkmcnt(0)")
            nst[0] += 1
    if OPT["cpf"]:
        a("""
        s_getpc_b64 s[26:27]
        v_lshlrev_b32 v5, 4, v0
        v_cmp_gt_u32 vcc, 672, v0
        s_and_b32 s26, s26, 0xffffff00
        s_and_saveexec_b64 s[22:23], vcc
        s_cbranch_execz K1_NOCPF
        global_load_dwordx4 v[60:63], v5, s[26:27]
K1_NOCPF:
        s_mov_b64 exec, s[22:23]
        """)
    a("""
    s_cmp_ge_u32 s2, 256
    s_cbranch_scc1 K1_END
    s_load_dwordx4 s[4:7], s[0:1], 8
    s_load_dwordx2 s[8:9], s[0:1], 24       ; dst
    s_load_dwordx2 s[10:11], s[0:1], 72     ; ws
    s_load_dwordx2 s[24:25], s[0:1], 0      ; x
    s_cmp_ge_u32 s2, 250
    s_cbranch_scc1 K1_MISC
    """)
    if OPT["stamps"]: a("s_memrealtime s[56:57]")
    stamp()
    NT = " nt" if OPT["k1nt"] else ""
    XT = "global_load_dwordx4 v[56:59], v5, s[24:25]" if OPT["k1x"] else ""
    X1 = OPT["k1x"]
    a(f"""
    v_lshlrev_b32 v1, 2, v0                 ; t*4
    v_mov_b32 v2, 0
    ds_write_b32 v1, v2
    v_lshlrev_b32 v3, 3, v0                 ; t*8
    v_add_u32 v4, {CH//2*4}, v3
    v_lshlrev_b32 v5, 4, v0                 ; t*16
    v_add_u32 v6, {CH//2*8}, v5
    s_mul_i32 s12, s2, {CH*4}
    s_mul_i32 s13, s2, {CH*8}
    s_mov_b32 s20, 0x050c0100
    v_cmp_gt_u32 vcc, {CH//4}, v0
    s_waitcnt lgkmcnt(0)
    s_add_u32 s8, s8, s12
    s_addc_u32 s9, s9, 0
    s_add_u32 s6, s6, s12
    s_addc_u32 s7, s7, 0
    s_add_u32 s4, s4, s13
    s_addc_u32 s5, s5, 0
    s_and_saveexec_b64 s[22:23], vcc
    global_load_dwordx2 v[8:9], v3, s[8:9]{NT}
    global_load_dwordx2 v[10:11], v4, s[8:9]{NT}
    v_mov_b32 v7, 1
    v_mov_b32 v2, 2
    s_add_u32 s24, s24, s12
    s_addc_u32 s25, s25, 0
    s_barrier
    global_load_dwordx2 v[12:13], v3, s[6:7]{NT}
    global_load_dwordx2 v[14:15], v4, s[6:7]{NT}
    global_load_dwordx4 v[16:19], v5, s[4:5]{NT}
    global_load_dwordx4 v[20:23], v6, s[4:5]{NT}
    s_waitcnt vmcnt(4)
    """)
    for i in range(4):
        a(f"v_lshlrev_b32_sdwa v{24+i}, v2, v{8+i} dst_sel:DWORD dst_unused:UNUSED_PAD src0_sel:DWORD src1_sel:BYTE_0")
    for i in range(4):
        a(f"ds_add_rtn_u32 v{28+i}, v{24+i}, v7")
    a(XT)
    a("""
    s_mov_b64 exec, -1
    v_mbcnt_lo_u32_b32 v32, -1, 0
    v_mbcnt_hi_u32_b32 v32, -1, v32         ; lane
    v_lshlrev_b32 v33, 4, v32
    s_waitcnt lgkmcnt(0)
    s_barrier
    """)
    stamp()
    a(f"""
    ds_read_b128 v[36:39], v33 offset:{K1_HIST}
    v_lshrrev_b32 v34, 6, v0
    s_nop 0
    v_readfirstlane_b32 s14, v34
    s_waitcnt lgkmcnt(0)
    v_add_u32 v40, v36, v37
    v_add_u32 v41, v40, v38
    v_add_u32 v42, v41, v39
    v_mov_b32 v43, v42
    """)
    scan64(a, 43)
    a(f"""
    v_sub_u32 v44, v43, v42                 ; exclusive
    v_add_u32 v45, v44, v36
    v_add_u32 v46, v44, v40
    v_add_u32 v47, v44, v41
    v_mul_u32_u24 v48, 12, v44
    v_mul_u32_u24 v49, 12, v45
    v_mul_u32_u24 v50, 12, v46
    v_mul_u32_u24 v51, 12, v47
    ds_write_b128 v33, v[48:51] offset:{K1_OFFS}
    s_mov_b64 exec, vcc
    """)
    for i in range(4):
        a(f"ds_read_b32 v{24+i}, v{24+i} offset:{K1_OFFS}")
    a(f"""
    s_waitcnt vmcnt({X1})
    v_perm_b32 v12, v8, v12, s20
    v_perm_b32 v13, v9, v13, s20
    v_perm_b32 v14, v10, v14, s20
    v_perm_b32 v15, v11, v15, s20
    s_cmp_ge_u32 s14, 4
    s_cbranch_scc1 K1_NOTAB
    s_mul_i32 s15, s2, {CH}
    s_cmp_eq_u32 s14, 1
    s_cbranch_scc1 K1_T1
    s_cmp_eq_u32 s14, 2
    s_cbranch_scc1 K1_T2
    s_cmp_eq_u32 s14, 3
    s_cbranch_scc1 K1_T3
    v_mov_b32 v52, v44
    v_mov_b32 v53, v36
    s_branch K1_TW
K1_T1:
    v_mov_b32 v52, v45
    v_mov_b32 v53, v37
    s_branch K1_TW
K1_T2:
    v_mov_b32 v52, v46
    v_mov_b32 v53, v38
    s_branch K1_TW
K1_T3:
    v_mov_b32 v52, v47
    v_mov_b32 v53, v39
K1_TW:
    v_add_u32 v52, s15, v52
    v_lshl_or_b32 v52, v52, 12, v53
    s_lshl_b32 s16, s14, 10
    s_lshl_b32 s17, s2, 2
    s_add_u32 s16, s16, s17
    s_add_u32 s16, s16, {WS_TAB}
    v_lshlrev_b32 v53, 12, v32
    v_add_u32 v53, s16, v53
    global_store_dword v53, v52, s[10:11]
K1_NOTAB:
    s_waitcnt lgkmcnt(0)
    """)
    for i in range(4):
        a(f"v_mad_u32_u24 v{24+i}, v{28+i}, 12, v{24+i}")
    for i in range(4):
        e0 = 16 + 2 * i
        a(f"v_add_u32 v{24+i}, {K1_STAGE}, v{24+i}")
    for i in range(4):
        e0 = 16 + 2 * i
        a(f"ds_write2_b32 v{24+i}, v{e0}, v{e0+1} offset0:0 offset1:1")
        a(f"ds_write_b32 v{24+i}, v{12+i} offset:8")
    a(f"""
    s_mul_i32 s12, s2, {CH*12}
    s_add_u32 s12, s12, {WS_REC}
    s_add_u32 s10, s10, s12
    s_addc_u32 s11, s11, 0
    v_add_u32 v6, {CH*4}, v5
    v_add_u32 v7, {CH*8}, v5
    s_waitcnt lgkmcnt(0)
    s_barrier
    """)
    stamp()
    a(f"""
    ds_read_b128 v[8:11], v5 offset:{K1_STAGE}
    ds_read_b128 v[12:15], v5 offset:{K1_STAGE+CH*4}
    ds_read_b128 v[16:19], v5 offset:{K1_STAGE+CH*8}
    s_waitcnt lgkmcnt(2)
    global_store_dwordx4 v5, v[8:11], s[10:11]
    s_waitcnt lgkmcnt(1)
    global_store_dwordx4 v6, v[12:15], s[10:11]
    s_waitcnt lgkmcnt(0)
    global_store_dwordx4 v7, v[16:19], s[10:11]
    """)
    if OPT["stamps"]:
        stamp()
        a("s_waitcnt vmcnt(0)")
        a("s_memrealtime s[58:59]")
        stamp()
        a(f"""
        s_cmp_lg_u32 s14, 0
        s_cbranch_scc1 K1_END
        s_load_dwordx2 s[10:11], s[0:1], 72
        s_lshl_b32 s12, s2, 6
        s_add_u32 s12, s12, {WS_DBG}
        v_mov_b32 v1, s12
        s_waitcnt lgkmcnt(0)
        """)
        for i in range(nst[0]):
            a(f"v_mov_b32 v2, s{60+2*i}\nglobal_store_dword v1, v2, s[10:11] offset:{4*i}")
        a("v_mov_b32 v2, s56\nglobal_store_dword v1, v2, s[10:11] offset:48\nv_mov_b32 v2, s58\nglobal_store_dword v1, v2, s[10:11] offset:52")
    a("""
    s_endpgm
K1_MISC:
    s_load_dwordx4 s[12:15], s[0:1], 32     ; u_w, v_w
    s_load_dwordx2 s[16:17], s[0:1], 48     ; g_w
    v_lshrrev_b32 v1, 6, v0
    v_mbcnt_lo_u32_b32 v2, -1, 0
    v_mbcnt_hi_u32_b32 v2, -1, v2           ; lane
    v_readfirstlane_b32 s18, v1             ; wave
    s_waitcnt lgkmcnt(0)
    """)
    a(f"""
    s_cmp_ge_u32 s18, 4
    s_cbranch_scc1 K1_M1
    s_lshl_b32 s19, s2, 2
    s_add_u32 s19, s19, {WS_TAB}
    v_lshlrev_b32 v3, 10, v0
    v_add_u32 v3, s19, v3
    v_mov_b32 v4, 0
    global_store_dword v3, v4, s[10:11]
K1_M1:
    s_sub_u32 s19, s2, 250
    s_mul_i32 s19, s19, 13
    s_add_u32 s19, s19, s18
    s_cmp_ge_u32 s19, 34
    s_cbranch_scc1 K1_END
    v_and_b32 v3, 31, v2                    ; n
    v_lshrrev_b32 v4, 5, v2                 ; h
    s_mov_b32 s27, 0xbfb8aa3b
    s_cmp_ge_u32 s19, 32
    s_cbranch_scc1 K1_MC
    s_lshr_b32 s20, s19, 3                  ; matrix 0:B 1:V 2:A 3:U
    s_bfe_u32 s21, s19, 0x10002             ; t
    s_and_b32 s22, s19, 3                   ; s
    s_cmp_eq_u32 s20, 1
    s_cselect_b32 s24, s14, s16
    s_cselect_b32 s25, s15, s17
    s_cmp_eq_u32 s20, 3
    s_cselect_b32 s24, s12, s24
    s_cselect_b32 s25, s13, s25
    s_cmp_eq_u32 s20, 0
    s_cselect_b32 s23, 8192, 0
    s_cselect_b32 s27, s27, 1.0
    s_lshl_b32 s26, s22, 11                 ; s*16 rows*128 B
    s_add_u32 s23, s23, s26
    s_lshl_b32 s26, s21, 1                  ; column 2n+t
    s_add_u32 s23, s23, s26
    v_lshlrev_b32 v5, 10, v4                ; h*8 rows*128
    v_lshl_add_u32 v5, v3, 2, v5
    v_add_u32 v5, s23, v5
    """)
    for j in range(8):
        a(f"global_load_ushort v{8+j}, v5, s[24:25] offset:{128*j}")
    a(f"""
    s_lshl_b32 s26, s19, 10
    v_lshlrev_b32 v6, 4, v2
    v_add_u32 v6, s26, v6
    s_waitcnt vmcnt(0)
    """)
    for j in range(8):
        a(f"v_lshlrev_b32 v{8+j}, 16, v{8+j}\nv_mul_f32 v{8+j}, s27, v{8+j}")
    for j in range(4):
        a(f"v_cvt_pk_bf16_f32 v{16+j}, v{8+2*j}, v{9+2*j}")
    a(f"""
    global_store_dwordx4 v6, v[16:19], s[10:11]
    s_endpgm
K1_MC:
    s_sub_u32 s21, s19, 32                  ; t
    s_lshl_b32 s26, s21, 1
    s_add_u32 s23, s26, {128*128}
    v_lshlrev_b32 v5, 2, v3
    v_add_u32 v5, s23, v5
    """)
    for j in range(4):
        a(f"global_load_ushort v{8+j}, v5, s[16:17] offset:{128*j}")
    a(f"""
    s_lshl_b32 s26, s21, 9
    s_add_u32 s26, s26, 32768
    v_lshlrev_b32 v6, 3, v2
    v_add_u32 v6, s26, v6
    v_cmp_gt_u32 vcc, 32, v2
    s_waitcnt vmcnt(0)
    """)
    for j in range(4):
        a(f"v_lshlrev_b32 v{8+j}, 16, v{8+j}\nv_mul_f32 v{8+j}, s27, v{8+j}")
    a("""
    v_cvt_pk_bf16_f32 v16, v8, v9
    v_cvt_pk_bf16_f32 v17, v10, v11
    v_lshlrev_b32 v12, 16, v16
    v_and_b32 v13, 0xffff0000, v16
    v_lshlrev_b32 v14, 16, v17
    v_and_b32 v15, 0xffff0000, v17
    v_sub_f32 v8, v8, v12
    v_sub_f32 v9, v9, v13
    v_sub_f32 v10, v10, v14
    v_sub_f32 v11, v11, v15
    v_cvt_pk_bf16_f32 v18, v8, v9
    v_cvt_pk_bf16_f32 v19, v10, v11
    v_cndmask_b32 v16, v18, v16, vcc
    v_cndmask_b32 v17, v19, v17, vcc
    global_store_dwordx2 v6, v[16:17], s[10:11]
K1_END:
    s_endpgm
    """)
    return a.text()

NROW = 131
L_XA = 0
L_AG = NROW * 256
L_GB = 2 * NROW * 256
L_RW = L_GB + 32768
L_RE = L_RW + 16384
L_CNT = L_RE + 32768
L_NOFF = L_CNT + 512
L_SP = L_NOFF + 512
L_FLG = L_SP + 1088
K2_LDS = L_FLG + 64
DUMMY = 130 * 256
SPILL0 = 98 * 256
NULLW = 0xFFFF | (DUMMY << 16)

V_TAB = 8
V_LANE, V_MAXD = 36, 37
V_ARE, V_AIDX, V_AGM, V_COL = 38, 39, 40, 41
V_ADR = [42, 44]
V_PV = [46, 48]
V_RES = [50, 52]
V_N, V_D, V_R = 54, 56, 58
V_T0, V_T1, V_PF = 60, 61, 62
V_Z0, V_H0, V_Z1, V_H1 = 64, 80, 96, 112
V_REC = 64
V_WB, V_WV = 128, 160
V_WC = [192, 196]
V_F = [200, 216]
V_XF = 200
V_PACC = 216
V_E = [232, 236]
V_IDX = 240
V_RD = 248

S_XG = 4
S_X = 8
S_OUT = 12
S_WS = 16
S_W, S_P, S_SEC, S_FIRST, S_SAFE, S_J0, S_WIN, S_N, S_T, S_GB = 20, 21, 22, 23, 24, 25, 26, 27, 28, 29
S_C = 30
S_ONE = 32
S_KK0, S_M, S_DD, S_B = 34, 35, 36, 37
S_TMP = 38
S_MSK = 48
S_ST = 80

REG = re.compile(r"v\[(\d+):(\d+)\]|v(\d+)")
def regs_of(op):
    out = []
    for m in REG.finditer(op):
        if m.group(3) is not None: out.append({int(m.group(3))})
        else: out.append(set(range(int(m.group(1)), int(m.group(2)) + 1)))
    return out

def rw_sets(line):
    s = line.strip()
    op = s.split()[0]
    r = regs_of(s[len(op):])
    if op.startswith("ds_read"): return set().union(*r[1:]), r[0]
    if op.startswith("ds_write"): return set().union(*r), set()
    if op.startswith("buffer_load") and " lds" in s: return set().union(*r), set()
    if op.startswith("v_"):
        rd = set().union(*r[1:]) if len(r) > 1 else set()
        if op.startswith("v_fmac"): rd = rd | r[0]
        return rd, r[0]
    return set(), set()

def add_lgkm_waits(body):
    n = len(body)
    need = [None] * n
    pend = []
    for rnd in range(3):
        for i, line in enumerate(body):
            s = line.strip()
            if s.startswith("@WAITREGS"):
                rd = set().union(*regs_of(s)); wr = set()
            else:
                rd, wr = rw_sets(s)
            touch = rd | wr
            idx = -1
            for k, d in enumerate(pend):
                if d & touch: idx = k
            if idx >= 0:
                w = min(len(pend) - 1 - idx, 15)
                need[i] = w if need[i] is None else min(need[i], w)
            if need[i] is not None:
                pend = pend[len(pend) - need[i]:] if need[i] > 0 else []
            if s.startswith("ds_"):
                pend.append(wr)
    out = []
    for i, line in enumerate(body):
        if need[i] is not None: out.append(f"s_waitcnt lgkmcnt({need[i]})")
        if not line.strip().startswith("@"): out.append(line)
    return out

TRANS = ("v_exp_f32", "v_rcp_f32")
def check_hazards(body, name):
    ins = [l.strip() for l in body if not (l.strip().endswith(":") or l.strip().startswith(";"))]
    n = len(ins)
    for i in range(n):
        s = ins[i]
        op = s.split()[0]
        rd_i, wr_i = rw_sets(s)
        dist = 0
        for k in range(1, 24):
            s2 = ins[(i + k) % n]
            op2 = s2.split()[0]
            rd, wr = rw_sets(s2)
            req = 0
            if op.startswith("v_mfma"):
                if op2.startswith("v_mfma"):
                    r2 = regs_of(s2[len(op2):])
                    if wr_i & (r2[1] | r2[2]): req = 12
                    if len(r2) > 3 and (wr_i & r2[3]) and wr_i != r2[3]: req = 10
                elif (rd | wr) & wr_i: req = 12
                r1 = regs_of(s[len(op):])
                if len(r1) > 3 and op2.startswith("v_") and not op2.startswith("v_mfma") and (wr & r1[3]): req = max(req, 7)
            elif op in TRANS:
                if op2.startswith("v_") and op2 not in TRANS and (rd & wr_i): req = 1
                if op2.startswith("v_mfma") and (rd & wr_i): req = 2
            elif op.startswith("v_"):
                if op2.startswith("v_mfma") and (rd & wr_i): req = 2
                if "sdwa" in op and op2.startswith("v_") and ((rd | wr) & wr_i): req = max(req, 0)
            elif op.startswith("s_") and " m0," in s:
                if " lds" in s2: req = 1
            if dist < req:
                raise SystemExit(f"hazard in {name}: '{s}' -> '{s2}' dist {dist} < {req}")
            m = re.match(r"s_nop (\d+)", s2)
            dist += int(m.group(1)) + 1 if m else 1

def mfmas(Z, H, t, F, Eop):
    L = []
    for s in range(4):
        c = "0" if s == 0 else vr(Z, 16)
        L.append(f"v_mfma_f32_32x32x16_bf16 {vr(Z,16)}, {vr(F+4*s,4)}, {vr(V_WB+16*t+4*s,4)}, {c}")
    L.append(f"v_mfma_f32_32x32x16_bf16 {vr(Z,16)}, {vr(Eop,4)}, {vr(V_WC[t],4)}, {vr(Z,16)}")
    for s in range(4):
        c = "0" if s == 0 else vr(H, 16)
        L.append(f"v_mfma_f32_32x32x16_bf16 {vr(H,16)}, {vr(F+4*s,4)}, {vr(V_WV+16*t+4*s,4)}, {c}")
    return L

def idx_reads(off):
    return [f"ds_read_u16 v{V_IDX+2*j}, v{V_AIDX} offset:{j*1024+off}" for j in range(4)]
def dma_m0(j): return f"s_add_u32 m0, s{S_GB}, {j*1024}"
def dma_ld(j, srd=S_XG): return f"buffer_load_dwordx4 {vr(V_IDX+2*j,2)}, {sr(srd,4)}, 0 idxen offen lds"
def dma_issue(srd):
    L = []
    for j in range(4): L += [dma_m0(j), "s_nop 0", dma_ld(j, srd)]
    return L
def frag_reads(F, Eop, off):
    return [f"ds_read_b128 {vr(F+4*s,4)}, v{V_RD+s}" for s in range(4)] + [f"ds_read_b64 {vr(Eop,2)}, v{V_ARE} offset:{off}"]
def gm_reads(ADR, off):
    return [f"ds_read_u16 v{ADR+p}, v{V_AGM} offset:{p*1024+off}" for p in range(2)]
def gm_adds(ADR):
    return [f"v_add_u32 v{ADR+p}, v{ADR+p}, v{V_COL}" for p in range(2)]
def xa_reads(ADR, t):
    return [f"ds_read_b32 v{V_WC[t]+2+p}, v{ADR+p} offset:{L_XA+4*t}" for p in range(2)]
def pv_reads(ADR):
    return [f"ds_read_b64 {vr(V_PV[p],2)}, v{ADR+p} offset:{L_AG}" for p in range(2)]
def res_writes(ADR):
    return [f"ds_write_b64 v{ADR+p}, {vr(V_RES[p],2)} offset:{L_AG}" for p in range(2)]

def unpk(op):
    m = re.match(r"v_pk_(\w+)_f32 (.*)", op)
    kind = m.group(1); ops = [x.strip() for x in m.group(2).split(",")]
    out = []
    for h in range(2):
        o = []
        for x in ops:
            mm = re.match(r"([vs])\[(\d+):(\d+)\]", x)
            o.append(f"{mm.group(1)}{int(mm.group(2))+h}")
        if kind == "add": out.append(f"v_add_f32 {o[0]}, 1.0, {o[1]}")
        elif kind == "fma" and o[0] == o[3]: out.append(f"v_fmac_f32 {o[0]}, {o[1]}, {o[2]}")
        else: out.append(f"v_{kind}_f32 " + ", ".join(o))
    return out

def chain_ops(Z, H):
    zp = lambda i: vr(Z + 2 * i, 2)
    hp = lambda i: vr(H + 2 * i, 2)
    Np, Dp = vr(V_N, 2), vr(V_D, 2)
    L = [(0, f"v_pk_add_f32 {Dp}, {zp(0)}, {sr(S_ONE,2)}")]
    for i in range(1, 8):
        src = hp(0) if i == 1 else Np
        L += [(i, f"v_pk_fma_f32 {Np}, {src}, {zp(i)}, {src}"),
              (i, f"v_pk_fma_f32 {Np}, {hp(i)}, {Dp}, {Np}"),
              (i, f"v_pk_fma_f32 {Dp}, {Dp}, {zp(i)}, {Dp}")]
    return L

def fin_ops(t):
    return [f"v_rcp_f32 v{V_R}, v{V_D}", f"v_rcp_f32 v{V_R+1}, v{V_D+1}",
            f"v_max3_f32 v{V_MAXD}, v{V_D}, v{V_D+1}, v{V_MAXD}",
            f"v_fma_f32 v{V_RES[0]+t}, v{V_N}, v{V_R}, v{V_PV[0]+t}",
            f"v_fma_f32 v{V_RES[1]+t}, v{V_N+1}, v{V_R+1}, v{V_PV[1]+t}"]

cost = lambda x: 8 if x.split()[0] in TRANS else 4

def phase_fast(Z, H, mf, finprev, extra, vextra):
    ex = lambda k: f"v_exp_f32 v{Z+k}, v{Z+k}"
    ch = chain_ops(Z, H)
    npl = OPT["npl"]
    plain = []
    for i, c in ch[:npl]:
        for x in unpk(c): plain.append((i, x))
    out = []
    ne = 0
    fin = list(finprev)
    for g in range(9):
        budget = 24 if g < 8 else 10**6
        items = []
        for x in vextra.get(g, []): items.append(x); budget -= 4
        last_exp = -10
        while budget > 0:
            if fin and cost(fin[0]) <= budget:
                x = fin.pop(0)
            elif fin:
                break
            else:
                can_plain = plain and ne >= 2 * plain[0][0] + 2 and not (items and items[-1] == ex(2 * plain[0][0] + 1)) \
                            and not (items and items[-1] == ex(2 * plain[0][0]))
                want_exp = ne < 16 and budget >= 8 and (not can_plain or ne < 2 * g + OPT["lead"])
                if want_exp: x = ex(ne); ne += 1
                elif can_plain: x = plain.pop(0)[1]
                else: break
            items.append(x); budget -= cost(x)
        out.append(mf[g])
        if OPT["prio"] and g in (3, 6): out.append(f"s_setprio {2 - g // 3}")
        xs = list(extra.get(g, []))
        groups = [[]]
        for x in xs:
            if x == "|": groups.append([])
            else: groups[-1].append(x)
        start = max(0, len(items) - len(groups))
        for k, x in enumerate(items):
            out.append(x)
            if k >= start and groups: out += groups.pop(0)
        for gp in groups: out += gp
    assert ne == 16 and not plain and not fin
    if OPT["prio"]: out.append("s_setprio 3")
    out += [c for _, c in ch[npl:]]
    if OPT["prio"]: out.append("s_setprio 2")
    return out

def phase_safe(Z, H, mf, t, extra, vextra):
    zp = lambda i: vr(Z + 2 * i, 2)
    v = [f"v_exp_f32 v{Z+k}, v{Z+k}" for k in range(16)]
    v += [f"v_add_f32 v{Z+k}, 1.0, v{Z+k}" for k in range(16)]
    v += [f"v_rcp_f32 v{Z+k}, v{Z+k}" for k in range(16)]
    v += [f"v_mul_f32 v{V_N+p}, v{H+p}, v{Z+p}" for p in range(2)]
    v += [f"v_fmac_f32 v{V_N+(k&1)}, v{H+k}, v{Z+k}" for k in range(2, 16)]
    out = []
    for g in range(9):
        out.append(mf[g])
        if g == 0: out += [f"v_add_f32 v{V_RES[p]+1-t}, v{V_N+p}, v{V_PV[p]+1-t}" for p in range(2)]
        out += vextra.get(g, [])
        out += v[5 * g: 5 * g + 5]
        for x in extra.get(g, []): out.append("s_nop 0" if x == "|" else x)
    out += v[45:]
    return out

def gen_loop(tag, safe=False):
    body = []
    T = S_TMP
    for u in range(2):
        cur, nxt = u, 1 - u
        G = OPT["gaps"]
        ex = {}
        def add(g, l): ex.setdefault(g, []).extend(l)
        add(G[0], res_writes(V_ADR[nxt]) + pv_reads(V_ADR[cur]) + gm_reads(V_ADR[nxt], 32 * (u + 1)))
        add(G[1], idx_reads(32 * (u + 2)))
        add(G[2], ["s_waitcnt vmcnt(0)"] + frag_reads(V_F[nxt], V_E[nxt], 64 * (u + 1)))
        add(G[3], xa_reads(V_ADR[nxt], 0))
        vx = {G[3]: gm_adds(V_ADR[nxt])}
        dma = [f"s_add_u32 s{T}, s{S_T}, 2", f"s_cmp_lt_u32 s{T}, s{S_N}", f"s_cselect_b32 s{S_XG+2}, {N}, 0", dma_m0(0), "|",
               f"@WAITREGS {vr(V_F[nxt],16)} {vr(V_IDX,8)}", dma_ld(0), dma_m0(1), "|", dma_ld(1), dma_m0(2), "|"]
        dma2 = [dma_ld(2), dma_m0(3), "|", dma_ld(3)]
        if G[4] < 9: add(G[4], dma); add(G[4] + 1, dma2)
        mf = mfmas(V_Z1, V_H1, 1, V_F[cur], V_E[cur])
        body += phase_safe(V_Z0, V_H0, mf, 0, ex, vx) if safe else phase_fast(V_Z0, V_H0, mf, fin_ops(1), ex, vx)
        ex = {}
        if G[4] >= 9: add(G[4] - 9, dma); add(G[4] - 8, dma2)
        add(G[5], xa_reads(V_ADR[nxt], 1))
        vx = {}
        if u == 1:
            vx[8] = [f"v_add_u32 v{V_ARE}, 128, v{V_ARE}", f"v_add_u32 v{V_AIDX}, 64, v{V_AIDX}", f"v_add_u32 v{V_AGM}, 64, v{V_AGM}"]
        add(5, [f"s_add_u32 s{S_T}, s{S_T}, 1"])
        mf = mfmas(V_Z0, V_H0, 0, V_F[nxt], V_E[nxt])
        body += phase_safe(V_Z1, V_H1, mf, 1, ex, vx) if safe else phase_fast(V_Z1, V_H1, mf, fin_ops(0), ex, vx)
        body += [f"s_cmp_lt_u32 s{S_T}, s{S_N}"]
        body += [f"s_cbranch_scc0 {tag}_EXIT0"] if u == 0 else [f"s_cbranch_scc1 {tag}_LOOP"]
    if OPT["nodma"]: body = [l for l in body if "buffer_load" not in l]
    if OPT["nolds"] == 1: body = [l for l in body if not l.strip().startswith("ds_")]
    body = add_lgkm_waits(body)
    check_hazards(body, tag)
    fin = [f"v_add_f32 v{V_RES[p]+1}, v{V_N+p}, v{V_PV[p]+1}" for p in range(2)] if safe else fin_ops(1)
    body += [f"v_mov_b32 v{V_ADR[0]}, v{V_ADR[1]}", f"v_mov_b32 v{V_ADR[0]+1}, v{V_ADR[1]+1}", f"{tag}_EXIT0:"]
    body += fin + res_writes(V_ADR[0])
    return body

def gen_k2():
    a = A()
    nst = [0]
    def stamp():
        if OPT["stamps"]:
            a(f"{MT()} s[{S_ST+2*nst[0]}:{S_ST+1+2*nst[0]}]\ns_waitcnt lgkmcnt(0)")
            nst[0] += 1
    T = S_TMP
    a(f"""
    s_load_dwordx2 s[{S_WS}:{S_WS+1}], s[0:1], 72
    s_load_dwordx2 s[{S_X}:{S_X+1}], s[0:1], 0
    s_load_dwordx2 s[{S_OUT}:{S_OUT+1}], s[0:1], 56
    s_cmp_ge_u32 s2, 256
    s_cbranch_scc1 K2_END
    v_lshrrev_b32 v1, 6, v0
    v_and_b32 v{V_LANE}, 63, v0
    v_readfirstlane_b32 s{S_W}, v1
    s_mov_b32 s{S_C}, 0xbfb8aa3b
    s_mov_b32 s{S_C+1}, 0xbfb8aa3b
    s_mov_b32 s{S_ONE}, 1.0
    s_mov_b32 s{S_ONE+1}, 1.0
    s_mov_b32 s{S_SAFE}, 0
    s_and_b32 s{T}, s2, 7
    s_lshl_b32 s{T}, s{T}, 5
    s_lshr_b32 s{S_B}, s2, 3
    s_or_b32 s{S_B}, s{S_B}, s{T}           ; bucket = (g&7)*32 + (g>>3)
    s_and_b32 s{S_P}, s{S_W}, 3
    s_lshr_b32 s{S_SEC}, s{S_W}, 2
    s_lshl_b32 s{S_GB}, s{S_W}, 12
    s_add_u32 s{S_GB}, s{S_GB}, {L_GB}
    s_mov_b32 s{S_WS+2}, {WS_REC + E*12}
    s_mov_b32 s{S_WS+3}, 0x00020000
    s_mov_b32 s{S_X+2}, {N}
    s_mov_b32 s{S_X+3}, 0x00020000
    s_mov_b32 s{S_XG+2}, {N}
    s_mov_b32 s{S_XG+3}, 0x00020000
    s_mov_b32 s{S_OUT+2}, {N}
    s_mov_b32 s{S_OUT+3}, 0x00020000
    s_waitcnt lgkmcnt(0)
    s_or_b32 s{S_X+1}, s{S_X+1}, 0x00800000
    s_or_b32 s{S_OUT+1}, s{S_OUT+1}, 0x00800000
    s_mov_b32 s{S_XG}, s{S_X}
    s_mov_b32 s{S_XG+1}, s{S_X+1}
    """)
    if OPT["stamps"]: a("s_memrealtime s[98:99]")
    stamp()
    a(f"""
K2_START:
    s_mov_b32 s{S_FIRST}, 1
    s_mov_b32 s{S_J0}, 0
    s_mov_b32 s{S_WIN}, 32
    v_mov_b32 v{V_MAXD}, 0
K2_ROUND:
    s_lshl_b32 s{T}, s{S_B}, 10
    s_lshl_b32 s{T+1}, s{S_W}, 7
    s_add_u32 s{T}, s{T}, s{T+1}
    s_add_u32 s{T}, s{T}, {WS_TAB}
    v_lshrrev_b32 v1, 4, v{V_LANE}
    v_lshlrev_b32 v1, 5, v1
    buffer_load_dwordx4 {vr(V_TAB,4)}, v1, {sr(S_WS,4)}, s{T} offen
    buffer_load_dwordx4 {vr(V_TAB+4,4)}, v1, {sr(S_WS,4)}, s{T} offen offset:16
    v_lshlrev_b32 v2, 4, v{V_LANE}          ; lane*16
    s_lshl_b32 s{T}, s{S_W}, 12
    """)
    for j in range(4):
        a(f"""
        s_add_u32 m0, s{S_GB}, {j*1024}
        s_add_u32 s{T+1}, s{T}, {j*1024}
        buffer_load_dwordx4 v2, {sr(S_WS,4)}, s{T+1} offen lds
        """)
    a(f"""
    v_lshrrev_b32 v3, 3, v{V_LANE}
    v_bfe_u32 v4, v{V_LANE}, 4, 1
    v_and_b32 v5, 7, v{V_LANE}
    v_xor_b32 v{V_T0}, v5, v4
    s_lshl_b32 s{T}, s{S_W}, 4
    v_add_u32 v3, s{T}, v3
    v_lshlrev_b32 v3, 8, v3
    v_add_u32 v6, s{S_B}, v3
    v_add_u32 v4, 2048, v6                  ; i=1
    s_and_b32 s{T+1}, s{S_W}, 1             ; j = 2*(w&1) + i
    s_lshl_b32 s{T+2}, s{T+1}, 2
    v_xor_b32 v7, s{T+2}, v{V_T0}
    v_xor_b32 v5, 2, v7
    v_lshlrev_b32 v7, 4, v7
    v_lshlrev_b32 v5, 4, v5
    s_lshr_b32 s{T+3}, s{S_W}, 1            ; tile
    s_and_b32 s{T+4}, s{T+3}, 1
    s_lshl_b32 s{T+4}, s{T+4}, 12
    s_cmp_ge_u32 s{T+3}, 2
    s_cselect_b32 s{T+5}, {L_AG-L_XA}, 0
    s_add_u32 s{T+4}, s{T+4}, s{T+5}
    s_add_u32 s{T+8}, s{T+4}, {L_XA+SPILL0}
    s_lshl_b32 s{T+1}, s{T+1}, 11
    s_add_u32 m0, s{T+8}, s{T+1}
    v_lshlrev_b32 v3, 3, v{V_LANE}
    buffer_load_dwordx4 v[6:7], {sr(S_X,4)}, 0 idxen offen lds
    s_add_u32 m0, m0, 1024
    s_mov_b32 s{T}, 32768
    buffer_load_dwordx4 v[4:5], {sr(S_X,4)}, 0 idxen offen lds
    buffer_load_dwordx2 {vr(V_WC[0],2)}, v3, {sr(S_WS,4)}, s{T} offen
    buffer_load_dwordx2 {vr(V_WC[1],2)}, v3, {sr(S_WS,4)}, s{T} offen offset:512
    ; (c) prefill
    v_lshlrev_b32 v3, 4, v0                 ; tid*16
    v_mov_b32 v4, {NULLW}
    v_mov_b32 v5, v4
    v_mov_b32 v6, v4
    v_mov_b32 v7, v4
    v_add_u32 v1, {L_RW}, v3
    v_mov_b32 v16, 0
    v_mov_b32 v17, 0
    v_mov_b32 v18, 0
    v_mov_b32 v19, 0
    ds_write_b128 v1, v[4:7]
    ds_write_b128 v1, v[4:7] offset:8192
    ds_write_b128 v1, v[16:19] offset:16384
    ds_write_b128 v1, v[16:19] offset:24576
    ds_write_b128 v1, v[16:19] offset:32768
    ds_write_b128 v1, v[16:19] offset:40960
    v_lshlrev_b32 v3, 3, v0
    v_add_u32 v1, {L_CNT}, v3
    v_mov_b32 v4, 0x7fff
    s_movk_i32 s{T+2}, {128+136}
    v_cmp_lt_u32 vcc, 127, v0
    v_cmp_gt_u32 s[{T}:{T+1}], s{T+2}, v0
    v_lshlrev_b32 v2, 2, v{V_LANE}
    v_cndmask_b32 v20, v16, v4, vcc
    v_mov_b32 v21, 0
    ds_write_b32 v2, v16 offset:{L_XA+DUMMY}
    v_add_u32 v2, {L_AG+DUMMY}, v2
    ds_write_b32 v2, v16
    s_mov_b64 exec, s[{T}:{T+1}]
    ds_write_b64 v1, v[20:21]
    s_mov_b64 exec, -1
    v_mov_b32 v1, {L_FLG}
    ds_write_b32 v1, v16
    s_cmp_eq_u32 s{S_FIRST}, 0
    s_cbranch_scc1 K2_NOFLG
    ds_write_b32 v1, v16 offset:4
K2_NOFLG:
    ; loop constants.  reader addresses: r(m)*128 + ((h^m3) | ((s ^ (m0|m2<<1))<<1))*16
    v_and_b32 v1, 1, v{V_LANE}              ; m0
    v_bfe_u32 v2, v{V_LANE}, 1, 1           ; m1
    v_bfe_u32 v3, v{V_LANE}, 2, 1           ; m2
    v_bfe_u32 v4, v{V_LANE}, 3, 1           ; m3
    v_bfe_u32 v5, v{V_LANE}, 4, 1           ; m4
    v_lshrrev_b32 v34, 5, v{V_LANE}         ; h
    v_lshl_or_b32 v35, v3, 1, v1            ; j(m) = 2*m2 + m0
    v_lshl_or_b32 v6, v4, 1, v2
    v_lshl_or_b32 v6, v5, 2, v6             ; i(m) = m1 + 2*m3 + 4*m4
    v_lshl_or_b32 v{V_T1}, v35, 3, v6       ; r(m)
    v_lshlrev_b32 v{V_T1}, 7, v{V_T1}
    v_xor_b32 v4, v4, v34                   ; h^m3
    v_lshl_or_b32 v4, v35, 1, v4
    v_lshl_or_b32 v{V_T1}, v4, 4, v{V_T1}   ; s=0 address, tile relative
    v_lshl_or_b32 v{V_ARE}, v35, 8, v6
    v_lshlrev_b32 v{V_ARE}, 3, v{V_ARE}
    v_lshrrev_b32 v{V_AIDX}, 3, v{V_LANE}
    v_lshlrev_b32 v{V_AIDX}, 2, v{V_AIDX}
    v_lshlrev_b32 v{V_AGM}, 11, v34
    v_and_b32 v{V_COL}, 31, v{V_LANE}
    v_lshlrev_b32 v{V_COL}, 3, v{V_COL}
    """)
    for s in range(4):
        a(f"v_xor_b32 v{V_RD+s}, {s<<5}, v{V_T1}")
    a(f"""
    ; (d) record addresses
    v_and_b32 v1, 15, v{V_LANE}
    v_cmp_gt_u32 vcc, s{S_WIN}, v1
    v_add_u32 v1, s{S_J0}, v1               ; j
    v_mul_u32_u24 v2, 12, v1
    v_add_u32 v2, {WS_REC}, v2
    v_mov_b32 v3, 0x7fffffff
    v_cndmask_b32 v1, v3, v1, vcc
    s_cmp_eq_u32 s{S_WIN}, 32
    s_cselect_b32 s{T}, 16, 0x40000000
    v_add_u32 v3, s{T}, v1
    s_and_b32 s{T+4}, s{S_P}, 1
    s_lshl_b32 s{T+4}, s{T+4}, 12
    s_cmp_ge_u32 s{S_P}, 2
    s_cselect_b32 s{T+5}, {L_AG-L_XA}, 0
    s_add_u32 s{T+4}, s{T+4}, s{T+5}
    s_add_u32 s{T+8}, s{T+4}, {L_XA+SPILL0}
    v_lshlrev_b32 v32, 4, v{V_LANE}
    v_add_u32 v32, {L_GB}, v32
    s_lshl_b32 s{T+2}, s{S_SEC}, 13
    v_add_u32 v33, s{T+2}, v32
    v_add_u32 v4, s{T+8}, v{V_RD}
    v_add_u32 v5, s{T+8}, v{V_RD+1}
    v_add_u32 v6, s{T+8}, v{V_RD+2}
    v_add_u32 v7, s{T+8}, v{V_RD+3}
    s_waitcnt vmcnt(0) lgkmcnt(0)
    s_barrier
    """)
    stamp()
    for s_ in range(4):
        a(f"ds_read_b128 {vr(V_XF+4*s_,4)}, v{4+s_}")
    for f in range(8):
        a(f"ds_read_b128 {vr(V_WB+4*f,4)}, v33 offset:{16384+f*1024}")
    for p in range(8):
        a(f"""
        v_and_b32 v{16+p}, 0xfff, v{V_TAB+p}
        v_lshrrev_b32 v{24+p}, 12, v{V_TAB+p}
        v_cmp_lt_u32 s[{S_MSK+16+2*p}:{S_MSK+16+2*p+1}], v3, v{16+p}
        v_mad_u32_u24 v{24+p}, v{24+p}, 12, v2
        """)
    for p in range(8):
        a(f"""
        s_mov_b64 exec, s[{S_MSK+16+2*p}:{S_MSK+16+2*p+1}]
        s_cbranch_execz K2_LB{p}
        buffer_load_dwordx3 {vr(V_REC+32+4*p,3)}, v{24+p}, {sr(S_WS,4)}, 0 offen offset:192
K2_LB{p}:
        """)
    a("s_mov_b64 exec, -1")
    for p in range(8):
        a(f"v_cmp_lt_u32 s[{S_MSK+2*p}:{S_MSK+2*p+1}], v1, v{16+p}")
    def recload(p):
        a(f"""
        s_mov_b64 exec, s[{S_MSK+2*p}:{S_MSK+2*p+1}]
        buffer_load_dwordx3 {vr(V_REC+4*p,3)}, v{24+p}, {sr(S_WS,4)}, 0 offen
        s_mov_b64 exec, -1
        """)
    recload(0); recload(1)
    a("s_waitcnt lgkmcnt(0)\ns_nop 1")
    for t in range(2):
        for s_ in range(4):
            c = "0" if s_ == 0 else vr(V_PACC + 16 * t, 16)
            a(f"v_mfma_f32_32x32x16_bf16 {vr(V_PACC+16*t,16)}, {vr(V_XF+4*s_,4)}, {vr(V_WB+16*t+4*s_,4)}, {c}")
    recload(2); recload(3)
    for f in range(8):
        a(f"ds_read_b128 {vr(V_WV+4*f,4)}, v32 offset:{8192+f*1024}")
    recload(4); recload(5)
    for f in range(8):
        a(f"ds_read_b128 {vr(V_WB+4*f,4)}, v32 offset:{f*1024}")
    recload(6); recload(7)
    a(f"""
    v_max3_u32 v4, v16, v17, v18
    v_max3_u32 v4, v19, v20, v4
    v_max3_u32 v4, v21, v22, v4
    v_max_u32 v4, v23, v4
    s_add_u32 s{T}, s{S_J0}, s{S_WIN}
    v_cmp_lt_u32 vcc, s{T}, v4
    v_mov_b32 v5, {L_FLG}
    v_mov_b32 v6, 1
    s_lshl_b32 s{T+2}, s{S_P}, 13           ; tile*32*256
    s_mul_i32 s{T+5}, s{S_SEC}, {L_AG-L_XA}
    s_add_u32 s{T+2}, s{T+2}, s{T+5}
    v_lshlrev_b32 v2, 12, v34               ; h*16*256
    v_add3_u32 v2, v2, v{V_COL}, s{T+2}
    s_mov_b64 exec, vcc
    ds_write_b32 v5, v6
    s_mov_b64 exec, -1
    s_cmp_eq_u32 s{S_FIRST}, 0
    s_cbranch_scc1 K2_NOINIT
    s_cmp_eq_u32 s{S_SEC}, 0
    s_cbranch_scc0 K2_NOSPLIT
    """)
    for i in range(0, 32, 2):
        r = V_PACC + i
        a(f"""
        v_pk_mul_f32 {vr(r,2)}, {vr(r,2)}, {sr(S_C,2)}
        v_cvt_pk_bf16_f32 v4, v{r}, v{r+1}
        v_lshlrev_b32 v6, 16, v4
        v_and_b32 v7, 0xffff0000, v4
        v_pk_add_f32 {vr(r,2)}, {vr(r,2)}, v[6:7] neg_lo:[0,1] neg_hi:[0,1]
        v_cvt_pk_bf16_f32 v{r}, v6, v{r}
        v_cvt_pk_bf16_f32 v{r+1}, v7, v{r+1}
        """)
    a(f"""
K2_NOSPLIT:
    s_cmp_eq_u32 s{S_P}, 3
    s_cselect_b32 exec_hi, 0, -1
    """)
    for rr in (0, 2):
        row = 8 * (rr & 1) + (rr >> 1)
        a(f"ds_write2_b32 v2, v{V_PACC+rr}, v{V_PACC+16+rr} offset0:{row*64} offset1:{row*64+1}")
    a("s_mov_b32 exec_hi, -1\ns_cbranch_scc1 K2_NOINIT")
    a("v_add_u32 v3, 1024, v2\nv_add_u32 v4, 2048, v2\nv_add_u32 v5, 3072, v2")
    for rr in range(16):
        if rr in (0, 2): continue
        row = 8 * (rr & 1) + (rr >> 1)
        a(f"ds_write2_b32 v{2+row//4}, v{V_PACC+rr}, v{V_PACC+16+rr} offset0:{(row%4)*64} offset1:{(row%4)*64+1}")
    a(f"""
K2_NOINIT:
    s_mov_b32 s{S_FIRST}, 0
    v_mov_b32 v1, 4096
    """)
    stamp()
    def rank(k):
        r = V_REC + 4 * k
        a(f"s_mov_b64 exec, s[{S_MSK+2*k}:{S_MSK+2*k+1}]")
        if k >= 8: a(f"s_cbranch_execz K2_RK{k}")
        a(f"""
        v_lshrrev_b32 v{16+k}, 22, v{r+2}
        v_add_u32 v{16+k}, {L_CNT}, v{16+k}
        ds_add_rtn_u32 v{r+3}, v{16+k}, v1
        """)
        if k >= 8: a(f"K2_RK{k}:")
    a("s_waitcnt vmcnt(8)")
    for k in range(8, 16): rank(k)
    for k in range(8):
        a(f"s_waitcnt vmcnt({7-k})")
        rank(k)
    a("s_mov_b64 exec, -1")
    for s_ in range(4):
        a(f"v_add_u32 v{V_RD+s_}, s{S_GB}, v{V_RD+s_}")
    for j in range(4):
        a(f"v_xor_b32 v4, {2*j}, v{V_T0}\nv_lshlrev_b32 v{V_IDX+2*j+1}, 4, v4")
    a(f"""
    v_lshlrev_b32 v4, 1, v34
    v_mov_b32 v5, 0x3f803f80
    v_cmp_eq_u32 vcc, v35, v4
    v_add_u32 v4, 1, v4
    v_cmp_eq_u32 s[{T}:{T+1}], v35, v4
    s_nop 0
    v_cndmask_b32 v{V_E[0]+2}, 0, v5, vcc
    v_cndmask_b32 v{V_E[1]+2}, 0, v5, vcc
    v_cndmask_b32 v{V_E[0]+3}, 0, v5, s[{T}:{T+1}]
    v_cndmask_b32 v{V_E[1]+3}, 0, v5, s[{T}:{T+1}]
    """)
    a(f"""
    s_mov_b64 exec, -1
    v_lshlrev_b32 v1, 3, v{V_LANE}
    v_add_u32 v1, {L_CNT}, v1
    v_lshrrev_b32 v8, 4, v{V_LANE}
    v_and_b32 v9, 15, v{V_LANE}
    s_lshl_b32 s{T+4}, s{S_P}, 3
    s_add_u32 s{T+4}, s{T+4}, s{S_SEC}
    v_lshl_add_u32 v10, v8, 1, s{T+4}       ; o
    v_lshlrev_b32 v11, 8, v10
    v_add_u32 v11, {SPILL0}, v11
    v_lshl_add_u32 v12, v9, 4, v11
    v_mov_b32 v32, 0
    v_mov_b32 v33, 0
    v_mov_b32 v34, 0
    v_mov_b32 v35, 0
    s_waitcnt lgkmcnt(0)
    s_barrier
    """)
    stamp()
    a(f"""
    ds_read_b64 v[2:3], v1
    ds_write_b128 v12, v[32:35] offset:{L_AG}
    s_waitcnt lgkmcnt(1)
    v_add_u32 v2, {7<<12}, v2
    v_add_u32 v3, {7<<12}, v3
    v_lshrrev_b32 v2, 15, v2
    v_lshrrev_b32 v3, 15, v3
    v_add_u32 v4, v2, v3
    v_mov_b32 v5, v4
    """)
    scan64(a, 5)
    a(f"""
    v_sub_u32 v6, v5, v4
    v_readlane_b32 s{T}, v5, 63             ; G
    v_add_u32 v7, v6, v2
    v_lshlrev_b32 v6, 15, v6
    v_lshlrev_b32 v7, 15, v7
    ds_write_b64 v1, v[6:7] offset:512
    s_cmp_gt_u32 s{T}, 512
    s_cbranch_scc1 K2_CAP
    """)
    for k in range(16):
        a(f"s_mov_b64 exec, s[{S_MSK+2*k}:{S_MSK+2*k+1}]")
        if k >= 8: a(f"s_cbranch_execz K2_NR{k}")
        a(f"ds_read_b32 v{16+k}, v{16+k} offset:512")
        if k >= 8: a(f"K2_NR{k}:")
    a(f"""
    s_mov_b64 exec, -1
    s_add_u32 s{T}, s{T}, 15
    s_lshr_b32 s{T}, s{T}, 4                ; Lp
    s_max_u32 s{T}, s{T}, 1
    v_cvt_f32_u32 v2, s{T}
    v_rcp_f32 v2, v2
    s_add_u32 s{T+1}, s{T}, 1
    s_lshr_b32 s{T+1}, s{T+1}, 1            ; n1
    s_sub_u32 s{T+2}, s{T}, s{T+1}          ; n2
    v_mul_f32 v2, 0x48000000, v2
    v_cvt_u32_f32 v2, v2
    v_add_u32 v2, 1, v2
    s_cmp_eq_u32 s{S_SEC}, 0
    s_cselect_b32 s{S_N}, s{T+1}, s{T+2}
    s_cselect_b32 s{S_KK0}, 0, s{T+1}
    v_readfirstlane_b32 s{S_M}, v2
    s_lshl_b32 s{T+3}, s{T}, 6
    s_sub_u32 s{S_DD}, 2048, s{T+3}         ; (256 - 8 Lp)*8
    s_lshl_b32 s{T}, s{S_P}, 10             ; 4P*256 slots
    s_lshl_b32 s{T+1}, s{S_KK0}, 3
    s_add_u32 s{T}, s{T}, s{T+1}
    s_lshl_b32 s{T+1}, s{T}, 3
    s_add_u32 s{T+1}, s{T+1}, {L_RE}
    s_lshl_b32 s{T+2}, s{T}, 2
    s_add_u32 s{T+2}, s{T+2}, {L_RW}
    s_add_u32 s{T+3}, s{T+2}, 2
    v_add_u32 v{V_ARE}, s{T+1}, v{V_ARE}
    v_add_u32 v{V_AIDX}, s{T+2}, v{V_AIDX}
    v_add_u32 v{V_AGM}, s{T+3}, v{V_AGM}
    v_lshlrev_b32 v13, 10, v8
    v_add_u32 v13, s{T+3}, v13
    v_lshl_add_u32 v14, v9, 5, v13          ; group k
    s_mov_b32 s{T+4}, {L_RE}
    s_waitcnt lgkmcnt(0)
    """)
    for k in range(16):
        r = V_REC + 4 * k
        a(f"s_mov_b64 exec, s[{S_MSK+2*k}:{S_MSK+2*k+1}]")
        if k >= 8: a(f"s_cbranch_execz K2_SC{k}")
        a(f"""
        v_add_u32 v{r+3}, v{16+k}, v{r+3}
        v_mul_hi_u32_u24 v{16+k}, s{S_M}, v{r+3}
        v_lshrrev_b32 v{r+3}, 9, v{r+3}
        v_mad_u32_u24 v{r+3}, v{16+k}, s{S_DD}, v{r+3}
        v_add_u32 v{r+3}, {L_RE}, v{r+3}
        v_lshrrev_b32 v{16+k}, 1, v{r+3}
        ds_write_b64 v{r+3}, {vr(r,2)}
        ds_write_b32 v{16+k}, v{r+2} offset:{L_RW - L_RE//2}
        """)
        if k >= 8: a(f"K2_SC{k}:")
    a(f"""
    s_mov_b64 exec, -1
    v_add_u32 v{V_ADR[1]}, {DUMMY}, v{V_COL}
    v_add_u32 v{V_ADR[1]+1}, {DUMMY}, v{V_COL}
    v_mov_b32 v{V_N}, 0
    v_mov_b32 v{V_N+1}, 0
    v_mov_b32 v{V_D}, 1.0
    v_mov_b32 v{V_D+1}, 1.0
    v_mov_b32 v{V_PV[0]+1}, 0
    v_mov_b32 v{V_PV[1]+1}, 0
    v_mov_b32 v{V_RES[0]}, 0
    v_mov_b32 v{V_RES[1]}, 0
    s_mov_b32 s{S_T}, 0
    s_cmp_lt_u32 s{S_N}, 2
    s_cselect_b32 s{S_XG+2}, 0, {N}
    s_waitcnt lgkmcnt(0)
    s_barrier
    """)
    stamp()
    a(f"""
    s_cmp_eq_u32 s{S_N}, 0
    s_cbranch_scc1 K2_DONE
    """)
    for l in idx_reads(0): a(l)
    a(f"""
    ds_read_u16 v15, v13
    ds_read_u16 v16, v14
    s_waitcnt lgkmcnt(2)
    """)
    for l in dma_issue(S_X): a(l)
    for l in idx_reads(32): a(l)
    a(f"""
    s_waitcnt lgkmcnt(4)
    v_lshl_add_u32 v17, v9, 4, v15
    ds_read_b128 v[32:35], v17 offset:{L_XA}
    v_cmp_eq_u32 vcc, v15, v16
    v_cmp_gt_u32 s[{T}:{T+1}], s{S_N}, v9
    s_and_b64 exec, vcc, s[{T}:{T+1}]
    ds_write_b16 v14, v11
    v_cmp_eq_u32 vcc, 0, v9
    v_lshrrev_b32 v18, 5, v15
    v_add_u32 v18, {L_SP}, v18
    v_add_u32 v19, 1, v10
    s_mov_b64 exec, vcc
    ds_min_u32 v18, v10
    ds_max_u32 v18, v19 offset:4
    s_mov_b64 exec, -1
    """)
    for l in gm_reads(V_ADR[0], 0): a(l)
    a(f"""
    s_waitcnt lgkmcnt(5)
    ds_write_b128 v12, v[32:35] offset:{L_XA}
    s_waitcnt lgkmcnt(1)
    """)
    for l in gm_adds(V_ADR[0]): a(l)
    for l in xa_reads(V_ADR[0], 0) + xa_reads(V_ADR[0], 1): a(l)
    a("s_waitcnt vmcnt(0)")
    for l in frag_reads(V_F[0], V_E[0], 0): a(l)
    mf = mfmas(V_Z0, V_H0, 0, V_F[0], V_E[0])
    for k in range(4): a(f"s_waitcnt lgkmcnt({4-k})\n{mf[k]}")
    for l in dma_issue(S_XG): a(l)
    a("s_waitcnt lgkmcnt(0)")
    for l in mf[4:]: a(l)
    stamp()
    a(f"""
    s_cmp_lg_u32 s{S_SAFE}, 0
    s_cbranch_scc1 K2S_PRE
    s_nop 7
    .p2align 6
K2F_LOOP:
    """)
    for l in gen_loop("K2F"): a(l)
    a(f"""
K2_DONE:
    s_setprio 0
    """)
    if OPT["stamps"]: a("s_waitcnt vmcnt(0) lgkmcnt(0)")
    stamp()
    a(f"""
    v_mov_b32 v1, 0x7b800000                ; 2^120
    v_cmp_lt_f32 vcc, v1, v{V_MAXD}
    v_lshrrev_b32 v2, 3, v0
    v_and_b32 v3, 7, v0
    v_mov_b32 v1, {L_FLG}
    v_mov_b32 v15, 1
    v_lshlrev_b32 v4, 5, v3                 ; f8*32
    v_lshl_add_u32 v5, v2, 8, v4
    v_add_u32 v5, {L_AG}, v5                ; AG address pass 0
    v_lshlrev_b32 v6, 3, v2
    v_add_u32 v6, {L_SP}, v6
    v_add_u32 v4, {L_AG+SPILL0}, v4
    v_cmp_gt_u32 s[{T+4}:{T+5}], 34, v2
    s_mov_b64 exec, vcc
    ds_write_b32 v1, v15 offset:4
    s_mov_b64 exec, -1
    v_lshlrev_b32 v12, 8, v2
    v_add_u32 v12, s{S_B}, v12              ; node
    v_lshlrev_b32 v13, 4, v3
    v_mov_b32 v64, 0
    v_mov_b32 v65, 0
    v_mov_b32 v66, 0
    v_mov_b32 v67, 0
    s_waitcnt vmcnt(0) lgkmcnt(0)
    s_barrier
    """)
    stamp()
    a(f"""
    ds_read_b64 v[8:9], v6
    ds_read_b64 v[10:11], v6 offset:512
    ds_read_b32 v7, v1
    ds_read_b128 v[16:19], v5
    ds_read_b128 v[20:23], v5 offset:16
    ds_read_b128 v[24:27], v5 offset:16384
    ds_read_b128 v[28:31], v5 offset:16400
    s_waitcnt lgkmcnt(4)
    v_readfirstlane_b32 s{T+6}, v7
K2_MRG:
    v_cmp_lt_u32 s[{T}:{T+1}], v8, v9
    v_cmp_lt_u32 s[{T+2}:{T+3}], v10, v11
    v_lshl_add_u32 v14, v8, 8, v4
    v_lshl_add_u32 v7, v10, 8, v4
    s_or_b64 vcc, s[{T}:{T+1}], s[{T+2}:{T+3}]
    s_cbranch_scc0 K2_MRGD
    s_mov_b64 exec, s[{T}:{T+1}]
    ds_read_b128 v[68:71], v14
    ds_read_b128 v[72:75], v14 offset:16
    v_add_u32 v8, 1, v8
    s_mov_b64 exec, s[{T+2}:{T+3}]
    ds_read_b128 v[76:79], v7
    ds_read_b128 v[80:83], v7 offset:16
    v_add_u32 v10, 1, v10
    s_mov_b64 exec, s[{T}:{T+1}]
    s_waitcnt lgkmcnt(2)
    """)
    for i in range(4): a(f"v_pk_add_f32 {vr(16+2*i,2)}, {vr(16+2*i,2)}, {vr(68+2*i,2)}")
    a(f"""
    s_mov_b64 exec, s[{T+2}:{T+3}]
    s_waitcnt lgkmcnt(0)
    """)
    for i in range(4): a(f"v_pk_add_f32 {vr(24+2*i,2)}, {vr(24+2*i,2)}, {vr(76+2*i,2)}")
    a(f"""
    s_mov_b64 exec, -1
    s_branch K2_MRG
K2_MRGD:
    s_cmp_lg_u32 s{T+6}, 0
    s_waitcnt lgkmcnt(0)
    s_cbranch_scc1 K2_NEXT
    """)
    def silu(base, tmp):
        for i in range(4): a(f"v_pk_mul_f32 {vr(tmp+2*i,2)}, {vr(base+2*i,2)}, {sr(S_C,2)}")
        for i in range(8): a(f"v_exp_f32 v{tmp+i}, v{tmp+i}")
        for i in range(4): a(f"v_pk_fma_f32 v[64:65], {vr(base+2*i,2)}, v[66:67], v[64:65]")
        for i in range(4): a(f"v_pk_add_f32 {vr(tmp+2*i,2)}, {vr(tmp+2*i,2)}, {sr(S_ONE,2)}")
        for i in range(8): a(f"v_rcp_f32 v{tmp+i}, v{tmp+i}")
        a("s_nop 0")
        for i in range(4): a(f"v_pk_mul_f32 {vr(tmp+2*i,2)}, {vr(tmp+2*i,2)}, {vr(base+2*i,2)}")
        for i in range(4): a(f"v_cvt_pk_bf16_f32 v{base+i}, v{tmp+2*i}, v{tmp+2*i+1}")
    silu(16, 68)
    a(f"""
    buffer_store_dwordx4 v[16:19], v[12:13], {sr(S_OUT,4)}, 0 idxen offen
    s_mov_b64 exec, s[{T+4}:{T+5}]
    s_cbranch_execz K2_OUT2
    v_add_u32 v10, {64*256}, v12
    v_mov_b32 v11, v13
    """)
    silu(24, 76)
    a(f"""
    buffer_store_dwordx4 v[24:27], v[10:11], {sr(S_OUT,4)}, 0 idxen offen
K2_OUT2:
    s_mov_b64 exec, -1
    v_cmp_u_f32 vcc, v64, v65
    s_cmp_lg_u32 s{S_SAFE}, 0
    s_cbranch_scc1 K2_FIN
    s_mov_b64 exec, vcc
    ds_write_b32 v1, v15 offset:4
    s_mov_b64 exec, -1
    s_waitcnt lgkmcnt(0)
    s_barrier
    ds_read_b32 v7, v1 offset:4
    s_waitcnt lgkmcnt(0)
    v_readfirstlane_b32 s{T}, v7
    s_cmp_lg_u32 s{T}, 0
    s_cbranch_scc1 K2_REDO
K2_FIN:
    """)
    if OPT["stamps"]:
        a("s_waitcnt vmcnt(0)")
        a("s_memrealtime s[100:101]")
        a(f"{MT()} s[{S_MSK}:{S_MSK+1}]")
        a(f"""
        s_load_dwordx2 s[2:3], s[0:1], 72
        s_lshl_b32 s{T}, s{S_B}, 3
        s_add_u32 s{T}, s{T}, s{S_W}
        s_lshl_b32 s{T}, s{T}, 6
        s_add_u32 s{T}, s{T}, {WS_DBG + 0x10000}
        v_mov_b32 v1, s{T}
        s_waitcnt lgkmcnt(0)
        """)
        assert nst[0] <= 9
        for i in range(nst[0]):
            a(f"v_mov_b32 v2, s{S_ST+2*i}\nglobal_store_dword v1, v2, s[2:3] offset:{4*i}")
        a(f"v_mov_b32 v2, s{S_MSK}\nglobal_store_dword v1, v2, s[2:3] offset:{4*nst[0]}")
        a(f"v_mov_b32 v2, s{S_N}\nglobal_store_dword v1, v2, s[2:3] offset:60")
        a("v_mov_b32 v2, s98\nglobal_store_dword v1, v2, s[2:3] offset:48\nv_mov_b32 v2, s100\nglobal_store_dword v1, v2, s[2:3] offset:52")
    a(f"""
K2_END:
    s_endpgm
K2_CAP:
    s_mov_b32 s{S_WIN}, 8
    s_waitcnt vmcnt(0) lgkmcnt(0)
    s_barrier
    s_branch K2_ROUND
K2_NEXT:
    ds_write_b128 v5, v[16:19]
    ds_write_b128 v5, v[20:23] offset:16
    s_mov_b64 exec, s[{T+4}:{T+5}]
    ds_write_b128 v5, v[24:27] offset:16384
    ds_write_b128 v5, v[28:31] offset:16400
    s_mov_b64 exec, -1
    s_add_u32 s{S_J0}, s{S_J0}, s{S_WIN}
    s_waitcnt lgkmcnt(0)
    s_barrier
    s_branch K2_ROUND
K2_REDO:
    s_mov_b32 s{S_SAFE}, 1
    s_waitcnt vmcnt(0)
    s_barrier
    s_branch K2_START
K2S_PRE:
    s_nop 7
K2S_LOOP:
    """)
    for l in gen_loop("K2S", safe=True): a(l)
    a("s_branch K2_DONE")
    return a.text()

def main():
    HEADER = open("standalone__edge_featured_mpnn_egc__graph.s.ref").read().split("; Override launch")[0]
    out = HEADER
    out += f"; @launch kernel=egc_bin_kernel grid=(256,1,1) block=({K1_BLOCK},1,1) lds={K1_LDS}\n"
    out += f"; @launch kernel=egc_main_kernel grid=(256,1,1) block=(512,1,1) lds={K2_LDS}\n"
    out += '.amdgcn_target "amdgcn-amd-amdhsa--gfx950"\n'
    out += khead("egc_bin_kernel") + gen_k1()
    out += khead("egc_main_kernel") + gen_k2()
    out += kd("egc_bin_kernel", 64, 80)
    out += kd("egc_main_kernel", 256, 102)
    open(sys.argv[1], "w").write(out)

if __name__ == '__main__':
    main()
```
